```python
import torch

def _softmax(x, axis=-1):
    return torch.softmax(x, dim=axis)
def _gelu(x):
    return torch.nn.functional.gelu(x, approximate="tanh")
def _silu(x):
    return torch.nn.functional.silu(x)
def _sigmoid(x):
    return torch.sigmoid(x)
def _layernorm(x, axis=-1, eps=1e-5):
    m = x.mean(dim=axis, keepdim=True)
    v = x.var(dim=axis, keepdim=True, unbiased=False)
    return (x - m) / torch.sqrt(v + eps)
def _scatter_add(tgt, idx, src, axis=0):
    return tgt.clone().index_add_(axis, idx, src)
def _segment_sum(src, seg, n):
    out = torch.zeros((n,) + src.shape[1:], dtype=src.dtype)
    return out.index_add_(0, seg, src)
def _pad(x, pw):
    flat = tuple(v for pair in reversed(pw) for v in pair)
    return torch.nn.functional.pad(x, flat)

kernel_name = 'interleave_layers__spectral_fnet__swiglu_ffn__prompt'

def setup_inputs():

    _w = (lambda a: (lambda t: t.to(torch.bfloat16) if t.is_floating_point() else t)(torch.as_tensor(a)))
    def _A_setup():
        B, S, D = 1, 2048, 576
        ns = torch.arange(S)[:, None] * torch.arange(S)[None, :]
        nd = torch.arange(D)[:, None] * torch.arange(D)[None, :]
        Ws_re = torch.cos(-2.0 * torch.pi * ns / S).to(float)
        Ws_im = torch.sin(-2.0 * torch.pi * ns / S).to(float)
        Wd_re = torch.cos(-2.0 * torch.pi * nd / D).to(float)
        Wd_im = torch.sin(-2.0 * torch.pi * nd / D).to(float)
        return {
            "x": _w((lambda *s: torch.randn(*s, dtype=torch.bfloat16) * 0.05)(B, S, D)),
            "dft_seq_re": _w(Ws_re),
            "dft_seq_im": _w(Ws_im),
            "dft_hid_re": _w(Wd_re),
            "dft_hid_im": _w(Wd_im),
        }
    _A_in = _A_setup()

    def _B_setup():
        B, S, D, F = 1, 2048, 576, 4608
        return {
            "x": _w((lambda *s: torch.randn(*s, dtype=torch.bfloat16) * 0.05)(B, S, D)),
            "w_gate": _w((lambda *s: torch.randn(*s, dtype=torch.bfloat16) * 0.2)(D, F)),
            "w_up": _w((lambda *s: torch.randn(*s, dtype=torch.bfloat16) * 0.2)(D, F)),
            "w_down": _w((lambda *s: torch.randn(*s, dtype=torch.bfloat16) * 0.2)(F, D)),
        }
    _B_in = _B_setup()

    return {
        "A_x": _A_in["x"],
        "A_dft_seq_re": _A_in["dft_seq_re"],
        "A_dft_seq_im": _A_in["dft_seq_im"],
        "A_dft_hid_re": _A_in["dft_hid_re"],
        "A_dft_hid_im": _A_in["dft_hid_im"],
        "B_x": _B_in["x"],
        "B_w_gate": _B_in["w_gate"],
        "B_w_up": _B_in["w_up"],
        "B_w_down": _B_in["w_down"],
    }

def reference(A_x, A_dft_seq_re, A_dft_seq_im, A_dft_hid_re, A_dft_hid_im, B_x, B_w_gate, B_w_up, B_w_down):
    def _A_ref(x, dft_seq_re, dft_seq_im, dft_hid_re, dft_hid_im):
        a = torch.einsum("bsd,ed->bse", x, dft_hid_re)
        b = torch.einsum("bsd,ed->bse", x, dft_hid_im)
        y = torch.einsum("ts,bse->bte", dft_seq_re, a) - torch.einsum("ts,bse->bte", dft_seq_im, b)
        return y

    def _B_ref(x, w_gate, w_up, w_down):
        g = _silu(x @ w_gate)
        u = x @ w_up
        return (g * u) @ w_down

    x = A_x
    x = x + _A_ref(_layernorm(x, axis=-1), A_dft_seq_re, A_dft_seq_im, A_dft_hid_re, A_dft_hid_im)
    x = x + _B_ref(_layernorm(x, axis=-1), B_w_gate, B_w_up, B_w_down)
    x = x + _A_ref(_layernorm(x, axis=-1), A_dft_seq_re, A_dft_seq_im, A_dft_hid_re, A_dft_hid_im)
    x = x + _B_ref(_layernorm(x, axis=-1), B_w_gate, B_w_up, B_w_down)
    return x
```

```python
import re

REG = re.compile(r'(?<![\w.])([vas])(?:(\d+)|\[(\d+):(\d+)\])(?![\w])')
TRANS = ('v_exp_f32','v_log_f32','v_rcp_f32','v_rsq_f32','v_sqrt_f32','v_sin_f32','v_cos_f32','v_rcp_iflag_f32',
         'v_exp_f16','v_log_f16','v_rcp_f16','v_rsq_f16','v_sqrt_f16','v_sin_f16','v_cos_f16')

def regs_of(op):
    out = []
    for m in REG.finditer(op):
        f = m.group(1)
        if m.group(2) is not None:
            out.append((f, int(m.group(2))))
        else:
            out += [(f, i) for i in range(int(m.group(3)), int(m.group(4)) + 1)]
    t = op.strip()
    if re.search(r'\bvcc\b', t): out += [('s', 'vcc')]
    if re.search(r'\bvcc_(lo|hi)\b', t): out += [('s', 'vcc')]
    if re.search(r'\bexec(_lo|_hi)?\b', t): out += [('s', 'exec')]
    if re.search(r'\bm0\b', t): out += [('s', 'm0')]
    return out

def split_ops(s):
    ops, depth, cur = [], 0, ''
    for ch in s:
        if ch in '[(': depth += 1
        if ch in '])': depth -= 1
        if ch == ',' and depth == 0:
            ops.append(cur.strip()); cur = ''
        else:
            cur += ch
    if cur.strip(): ops.append(cur.strip())
    return ops

class Ins:
    __slots__ = ('text','mn','ops','defs','uses','kind','passes','A','B','C','D','tag','wide','data','dpp','opsel')
    def __init__(self, text, tag=None):
        self.text = text; self.tag = tag
        t = text.split(';')[0].strip()
        p = t.split(None, 1)
        mn = p[0]; self.mn = mn
        rest = p[1] if len(p) > 1 else ''
        ops = split_ops(rest); self.ops = ops
        R = [regs_of(o) for o in ops]
        flat = lambda L: [r for x in L for r in x]
        self.passes = 0; self.A = self.B = self.C = self.D = (); self.wide = False; self.data = ()
        self.dpp = ('_dpp' in mn) or bool(re.search(r'\b(row_shr|row_shl|row_ror|quad_perm|row_bcast|row_mirror|row_half_mirror|wave_sh|wave_ro|row_newbcast|row_xmask|row_share)', rest))
        self.opsel = ('_sdwa' in mn and 'dst_sel:DWORD' not in rest) or 'mixhi' in mn or (('op_sel:' in rest) and not mn.startswith('v_pk_') and not mn.startswith('v_dot') and not mn.startswith('v_fma_mix_f32') and not mn.startswith('v_fma_mixlo'))
        base = re.sub(r'_(e32|e64|dpp|sdwa)$', '', mn)
        if mn.startswith('v_mfma'):
            self.kind = 'mfma'
            self.D, self.A, self.B, self.C = R[0], R[1], R[2], R[3]
            self.defs = R[0]; self.uses = R[1] + R[2] + R[3]
            if '32x32x16' in mn or '32x32x8' in mn: self.passes = 8
            elif '16x16x32' in mn or '16x16x16' in mn: self.passes = 4
            elif '4x4x4' in mn: self.passes = 2
            else: raise ValueError('unknown mfma ' + mn)
        elif mn.startswith('v_'):
            self.kind = 'valu'
            if base in TRANS: self.kind = 'trans'
            if base.startswith('v_dot'): self.kind = 'dot'
            if base == 'v_nop':
                self.defs = []; self.uses = []
            elif base.startswith('v_cmpx'):
                self.defs = R[0] + [('s','exec')]; self.uses = flat(R[1:])
            elif base.startswith(('v_add_co', 'v_sub_co', 'v_subrev_co', 'v_addc_co', 'v_subb_co', 'v_div_scale', 'v_mad_u64')):
                self.defs = R[0] + R[1]; self.uses = flat(R[2:])
            elif base.startswith(('v_permlane32_swap', 'v_permlane16_swap', 'v_swap')):
                self.defs = R[0] + R[1]; self.uses = R[0] + R[1]
            elif base.startswith(('v_fmac', 'v_dot2c', 'v_pk_fmac', 'v_writelane', 'v_fma_mixhi', 'v_fma_mixlo')) or self.dpp or self.opsel:
                self.defs = R[0]; self.uses = flat(R)
            else:
                self.defs = R[0]; self.uses = flat(R[1:])
        elif mn.startswith('ds_'):
            self.kind = 'ds'
            if mn.startswith(('ds_read', 'ds_bpermute', 'ds_permute', 'ds_swizzle')) or '_rtn' in mn:
                self.defs = R[0]; self.uses = flat(R[1:])
                if 'd16' in mn: self.uses = flat(R)
            else:
                self.defs = []; self.uses = flat(R)
        elif mn.startswith(('buffer_', 'global_')):
            self.kind = 'vmem'
            lds = bool(re.search(r'\blds\b', rest)) or '_lds_' in mn
            if mn.startswith(('buffer_wbl2', 'buffer_inv')):
                self.defs = []; self.uses = []
            elif lds:
                self.defs = []; self.uses = flat(R) + [('s','m0')]; self.kind = 'dma'
            elif '_load' in mn:
                self.defs = R[0]; self.uses = flat(R[1:])
                if 'd16' in mn: self.uses = flat(R)
            elif '_atomic' in mn:
                ret = bool(re.search(r'\bsc0\b', rest))
                self.defs = R[0] if ret else []; self.uses = flat(R)
            else:
                self.defs = []; self.uses = flat(R)
                self.data = R[0] if mn.startswith('buffer_') else R[1]
                self.wide = mn.endswith(('x3', 'x4'))
        elif mn.startswith(('s_load', 's_buffer_load', 's_memtime', 's_memrealtime', 's_atomic')):
            self.kind = 'smem'; self.defs = R[0]; self.uses = flat(R[1:])
        elif mn.startswith('s_'):
            self.kind = 'salu'
            if mn.startswith(('s_cmp', 's_waitcnt', 's_branch', 's_cbranch', 's_barrier', 's_nop', 's_setprio', 's_sleep', 's_endpgm', 's_bitcmp', 's_setreg', 's_setpc')):
                self.defs = []; self.uses = flat(R)
            elif 'saveexec' in mn:
                self.defs = R[0] + [('s','exec')]; self.uses = flat(R[1:]) + [('s','exec')]
            elif mn.startswith(('s_addk', 's_mulk', 's_cmov', 's_bitset')):
                self.defs = R[0]; self.uses = flat(R)
            else:
                self.defs = R[0]; self.uses = flat(R[1:])
        else:
            raise ValueError('unknown instr: ' + text)
        self.defs = set(self.defs); self.uses = set(self.uses)
    def states(self):
        if self.mn == 's_nop': return int(self.ops[0], 0) + 1
        return 1

VALUISH = ('valu', 'trans', 'dot')

def need(p, c):
    n = 0
    vd = {r for r in p.defs if r[0] != 's'}
    sd = {r for r in p.defs if r[0] == 's'}
    if p.kind == 'mfma':
        P = p.passes
        big = {2: 5, 4: 8, 8: 12, 16: 20}[P]
        if c.kind == 'mfma':
            if vd & (set(c.A) | set(c.B)): n = max(n, big)
            if vd & set(c.C):
                if list(c.C) == list(p.D) and c.passes == P: n = max(n, 2 if P == 2 else 0)
                else: n = max(n, P + 2)
            elif vd & set(c.D):
                n = max(n, P + 2)
        elif c.kind in VALUISH + ('vmem', 'ds', 'dma'):
            if vd & (c.uses | c.defs): n = max(n, big)
        if c.kind in VALUISH and set(p.C) & c.defs: n = max(n, P - 1)
    if p.kind in VALUISH:
        if c.kind == 'mfma' and vd & c.uses: n = max(n, 2)
        if c.kind in VALUISH:
            if c.dpp and vd & c.uses: n = max(n, 2)
            if c.mn.startswith('v_permlane') and vd & c.uses: n = max(n, 2)
            if c.mn.startswith(('v_readlane', 'v_readfirstlane')) and vd & c.uses: n = max(n, 1)
            if p.kind == 'trans' and c.kind != 'trans' and vd & c.uses: n = max(n, 1)
            if p.opsel and vd & (c.uses | c.defs): n = max(n, 1)
            if sd & c.uses:
                n = max(n, 4 if c.mn.startswith(('v_readlane', 'v_writelane', 'v_div_fmas')) else 2)
            if ('s','exec') in sd:
                if c.dpp: n = max(n, 5)
                if c.mn.startswith(('v_readlane', 'v_readfirstlane', 'v_writelane', 'v_permlane')): n = max(n, 4)
        if c.kind == 'mfma' and ('s','exec') in sd: n = max(n, 4)
        if c.kind in ('vmem', 'dma') and sd & c.uses: n = max(n, 5)
        if c.kind in ('salu', 'smem') and sd & c.uses: n = max(n, 1)
        if p.kind == 'dot' and vd & (c.uses | c.defs):
            same = re.sub(r'_(e32|e64)$', '', p.mn) == re.sub(r'_(e32|e64)$', '', c.mn)
            srcab = set(regs_of(c.ops[1]) + regs_of(c.ops[2])) if c.kind == 'dot' else set()
            if not (same and not (vd & srcab)): n = max(n, 3)
    if p.kind == 'salu' and ('s','m0') in sd and (c.kind == 'dma' or 'addtid' in c.mn): n = max(n, 1)
    if p.kind == 'vmem' and p.wide and set(p.data) & c.defs:
        n = max(n, 2 if c.kind in VALUISH + ('mfma',) else 1)
    return n

class Asm:
    def __init__(self):
        self.out = []
        self.hist = []
        self.vm = []
        self.lg = []
        self.nops = 0
        self.n_ins = 0
        self.auto = True
    def raw(self, s): self.out.append(s)
    def label(self, name, keep=False):
        self.out.append(name + ':')
    def _emit(self, ins):
        self.out.append('    ' + ins.text); self.hist.append(ins); self.n_ins += 1
        if len(self.hist) > 40: self.hist.pop(0)
    def _wait(self, vm=None, lg=None):
        parts = []
        if vm is not None and vm < len(self.vm):
            assert vm <= 63; parts.append('vmcnt(%d)' % vm); self.vm = self.vm[len(self.vm) - vm:] if vm else []
        if lg is not None and lg < len(self.lg):
            if any(x[2] for x in self.lg): lg = 0
            if lg > 15: lg = 15
            parts.append('lgkmcnt(%d)' % lg); self.lg = self.lg[len(self.lg) - lg:] if lg else []
        if parts: self._emit(Ins('s_waitcnt ' + ' '.join(parts)))
    def wait_tag(self, tag):
        vm = lg = None
        for i, x in enumerate(self.vm):
            if x[1] == tag: vm = len(self.vm) - 1 - i
        for i, x in enumerate(self.lg):
            if x[1] == tag: lg = len(self.lg) - 1 - i
        if vm is not None and vm > 63: vm = 63
        self._wait(vm, lg)
    def wait_all(self, vm=True, lg=True, force=False):
        if force:
            self._emit(Ins('s_waitcnt ' + ' '.join((['vmcnt(0)'] if vm else []) + (['lgkmcnt(0)'] if lg else []))))
            if vm: self.vm = []
            if lg: self.lg = []
        else:
            self._wait(0 if vm else None, 0 if lg else None)
    def __call__(self, text, tag=None):
        for line in text.split('\n'):
            line = line.strip()
            if not line or line.startswith(';'): continue
            self.ins(line, tag)
    def ins(self, text, tag=None):
        ins = Ins(text, tag)
        if ins.mn == 's_waitcnt':
            m = re.search(r'vmcnt\((\d+)\)', text)
            if m:
                n = int(m.group(1)); self.vm = self.vm[max(0, len(self.vm) - n):] if n else []
            m = re.search(r'lgkmcnt\((\d+)\)', text)
            if m:
                n = int(m.group(1)); self.lg = self.lg[max(0, len(self.lg) - n):] if n else []
            self._emit(ins); return
        touched = ins.defs | ins.uses
        vm = lg = None
        for i, x in enumerate(self.vm):
            if x[0] & touched: vm = len(self.vm) - 1 - i
        for i, x in enumerate(self.lg):
            if x[0] & touched: lg = len(self.lg) - 1 - i
        if vm is not None and vm > 63: vm = 63
        self._wait(vm, lg)
        if ins.kind in ('vmem', 'dma') and len(self.vm) >= 63: self._wait(62, None)
        dist = 0; pad = 0
        for p in reversed(self.hist):
            n = need(p, ins)
            if n - dist > pad: pad = n - dist
            dist += p.states()
            if dist >= 20: break
        while pad > 0:
            k = min(pad, 16); self._emit(Ins('s_nop %d' % (k - 1))); pad -= k; self.nops += k
        self._emit(ins)
        if ins.kind in ('vmem', 'dma'): self.vm.append((set(ins.defs), tag))
        elif ins.kind == 'ds': self.lg.append((set(ins.defs), tag, False))
        elif ins.kind == 'smem': self.lg.append((set(ins.defs), tag, True))
    def fence(self):
        dist = 0; pad = 0
        for p in reversed(self.hist):
            n = 0
            if p.kind == 'mfma': n = {2: 5, 4: 8, 8: 12, 16: 20}[p.passes]
            elif p.kind in VALUISH: n = 5 if any(r[0] == 's' for r in p.defs) else (3 if p.kind == 'dot' else 2)
            elif p.kind == 'vmem' and p.wide: n = 2
            elif p.kind == 'salu': n = 1 if ('s','m0') in p.defs else 0
            if n - dist > pad: pad = n - dist
            dist += p.states()
            if dist >= 20: break
        while pad > 0:
            k = min(pad, 16); self._emit(Ins('s_nop %d' % (k - 1))); pad -= k; self.nops += k
    def state(self): return (list(self.hist), list(self.vm), list(self.lg))
    def restore(self, st): self.hist, self.vm, self.lg = list(st[0]), list(st[1]), list(st[2])
    def reset(self): self.hist, self.vm, self.lg = [], [], []
    def text(self): return '\n'.join(self.out) + '\n'

def kernel_begin(a, name):
    a.raw('.globl %s' % name); a.raw('.p2align 8'); a.raw('.type %s,@function' % name); a.raw('%s:' % name); a.reset()

def kernel_desc(name, vgpr, sgpr=102, accum=None):
    if accum is None: accum = (min(vgpr, 256) + 3) // 4 * 4
    return ('.p2align 6\n.amdhsa_kernel %s\n  .amdhsa_next_free_vgpr %d\n  .amdhsa_next_free_sgpr %d\n  .amdhsa_accum_offset %d\n'
            '  .amdhsa_group_segment_fixed_size 0\n  .amdhsa_kernarg_size 96\n  .amdhsa_user_sgpr_count 2\n'
            '  .amdhsa_user_sgpr_kernarg_segment_ptr 1\n  .amdhsa_system_sgpr_workgroup_id_x 1\n'
            '  .amdhsa_float_denorm_mode_32 3\n  .amdhsa_float_denorm_mode_16_64 3\n.end_amdhsa_kernel\n') % (name, vgpr, sgpr, accum)

def file_text(launches, body, descs, header=''):
    s = header
    for (k, g, b, lds) in launches:
        s += '; @launch kernel=%s grid=(%d,1,1) block=(%d,1,1) lds=%d\n' % (k, g, b, lds)
    s += '.amdgcn_target "amdgcn-amd-amdhsa--gfx950"\n.text\n' + body + '.section .rodata,"a"\n' + ''.join(descs)
    return s

def vr(b, n=1): return 'v%d' % b if n == 1 else 'v[%d:%d]' % (b, b + n - 1)
def ar(b, n=1): return 'a%d' % b if n == 1 else 'a[%d:%d]' % (b, b + n - 1)
def sr(b, n=1): return 's%d' % b if n == 1 else 's[%d:%d]' % (b, b + n - 1)
```

```python
from ab import *
from layout import *
from collections import deque

SLOT = 36864
NOSILU = 0; NODMA = 0; NODS = 0; NOBAR = 0; E64 = 0; NOST = 0
NPRE = 27; GAP1 = 4; GAP2 = 8; NPRE2 = 34; GAP3 = 4
LOG2E = 1.4426950408889634

def f2u(x):
    import struct
    return '0x%08x' % struct.unpack('<I', struct.pack('<f', x))[0]

class Sched:
    def __init__(self, a):
        self.a = a; self.hi = deque(); self.lo = deque(); self.mem = deque(); self.n = 0; self.gap = 5; self.lastmem = -99
    def push(self, q, text, cost=1, tag=None, pre=None, after=0):
        q.append((text, cost, tag, pre or [], after))
    def emit_item(self, it):
        t = it[0]
        if self.n > 504:
            if NOSILU and t.startswith('v_'): return
            if NODMA and t.endswith('lds'): return
            if NODS and t.startswith('ds_read'): return
            if NOST and t.startswith('buffer_store'): return
        if E64 and t.split()[0] in ('v_mul_f32', 'v_exp_f32', 'v_rcp_f32') and '0x' not in t: t = t.replace(' ', '_e64 ', 1)
        for p in it[3]: self.a(p)
        self.a(t, it[2])
    def mfma(self, text, scalar=None, budget=2):
        a = self.a
        mi = Ins(text)
        for q in (self.hi, self.lo, self.mem):
            for it in q:
                qi = Ins(it[0])
                assert not (qi.defs & (set(mi.A) | set(mi.B))) or qi.kind == 'never', 'MFMA %s reads a register whose producer is still queued: %s' % (text, it[0])
                assert not ((qi.defs | qi.uses) & mi.defs), 'MFMA %s writes a register a queued item touches: %s' % (text, it[0])
        a(text); self.n += 1
        sfree = 1
        if scalar:
            before = a.n_ins; scalar(); used = a.n_ins - before
            if used: sfree = 0; budget -= (used - 1)
        while budget > 0:
            done = False
            for q in (self.hi, self.mem, self.lo):
                if q and q[0][4] <= self.n:
                    it = q[0]
                    isv = it[0].startswith('buffer_')
                    if isv and self.n - self.lastmem < (self.gap if q is self.mem else 2): continue
                    c = it[1] + max(0, len(it[3]) - sfree)
                    if c <= budget or (c > 2 and budget == 2):
                        q.popleft(); self.emit_item(it); budget -= c; sfree = 0; done = True
                        if isv: self.lastmem = self.n
                        break
            if not done: break
    def drain(self, q):
        while q: self.emit_item(q.popleft())

def prewait(a, regs):
    touched = set(regs_of(regs))
    vm = lg = None
    for i, x in enumerate(a.vm):
        if x[0] & touched: vm = len(a.vm) - 1 - i
    for i, x in enumerate(a.lg):
        if x[0] & touched: lg = len(a.lg) - 1 - i
    a._wait(vm, lg)

V_HX = 0
vLANE16 = 1
vL = [2, 3, 4, 5]
vH = 6; vAS = 7; vAL = 8; vPO = 9; vP8 = 10
vC1 = 12; vS2 = 16
vT = 20
vPK = 36
vFR = 44
vGR = 76
vACC = 92
vHX = 220
NV = 252
sWV = 3; sM0 = 12; sW1 = 13; sW2 = 14; sTA = 15; sTB = 16; sTC = 17; sTD = 18
sST = 44

def hreg(i):
    return ar(4 * i, 4) if i < 64 else vr(vHX + 4 * (i - 64), 4)

def stamp(a, k, on):
    if on:
        a('s_memtime %s' % sr(sST + 2 * k, 2))
        a('s_memrealtime %s' % sr(sST + 24 + 2 * k, 2))

def stamp_out(a, nst, idx, on):
    if not on: return
    a('s_memrealtime %s' % sr(sST + 2 * nst, 2))
    a.wait_all(force=True)
    a('s_lshl_b32 s20, s2, 10\ns_lshl_b32 s21, s%d, 8\ns_add_u32 s20, s20, s21\ns_add_u32 s20, s20, %d' % (sWV, WS_STAMP + idx * 262144))
    a('v_mov_b32 v20, 0')
    a('s_mov_b64 exec, 1')
    for k in list(range(-1, nst + 1)) + list(range(12, 12 + nst)):
        a('v_mov_b32 v22, s%d\nv_mov_b32 v23, s%d' % (sST + 2 * k, sST + 2 * k + 1))
        a('buffer_store_dwordx2 v[22:23], v20, s[8:11], s20 offen offset:%d' % (8 * (k + 1)))
        a('s_nop 1')

def common_prologue(a, name, st):
    kernel_begin(a, name)
    if st: a('s_memrealtime %s' % sr(sST - 2, 2))
    stamp(a, 0, st)
    a('s_load_dwordx2 s[4:5], s[0:1], 88')
    a('s_cmp_ge_u32 s2, 256')
    a('s_cbranch_scc1 %s_end' % name)
    a('v_lshrrev_b32 v20, 6, v0')
    a('v_and_b32 v21, 63, v0')
    a('v_readfirstlane_b32 s%d, v20' % sWV)
    a('v_lshlrev_b32 v%d, 4, v21' % vLANE16)
    a('s_and_b32 s20, s2, 1\ns_lshl_b32 s20, s20, 2\ns_lshr_b32 s21, s2, 6\ns_add_u32 s20, s20, s21')
    a('s_bfe_u32 s21, s2, 0x20001')
    a('s_bfe_u32 s22, s2, 0x30003')
    a('s_mul_i32 s%d, s%d, 9216' % (sM0, sWV))
    for k in range(4):
        a('v_add_u32 v%d, %d, v%d' % (vL[k], k * SLOT, vLANE16))
    a('v_and_b32 v22, 15, v21\nv_lshrrev_b32 v23, 4, v21')
    a('s_waitcnt lgkmcnt(0)')
    a('s_mov_b32 s8, s4\ns_mov_b32 s9, s5\ns_mov_b32 s10, 0x10000000\ns_mov_b32 s11, 0x20000')

def g1_setup(a):
    a('s_lshl_b32 s23, s21, 3\ns_add_u32 s23, s23, s22')
    a('s_mul_i32 s%d, s23, %d\ns_add_u32 s%d, s%d, s%d' % (sW1, 9 * SLOT, sW1, sW1, sM0))
    if WS_W1: a('s_add_u32 s%d, s%d, %d' % (sW1, sW1, WS_W1))
    a('s_lshl_b32 s24, s20, 2\ns_add_u32 s24, s24, s%d' % sWV)
    a('s_lshl_b32 s25, s24, 10\ns_add_u32 s25, s25, %d' % WS_X1)
    a('v_lshlrev_b32 v24, 15, v23\nv_lshl_add_u32 v24, v22, 4, v24\nv_add_u32 v%d, s25, v24' % vH)
    a('s_mul_i32 s25, s24, %d\ns_mul_i32 s26, s23, %d\ns_add_u32 s25, s25, s26\ns_add_u32 s25, s25, %d' % (2 * 576 * 512, 18 * 512, WS_ACT))
    a('v_add_u32 v%d, s25, v%d' % (vAS, vLANE16))

def g2_setup(a):
    a('s_and_b32 s24, s22, 3\ns_lshr_b32 s25, s22, 2')
    a('s_lshl_b32 s26, s21, 2\ns_add_u32 s26, s26, s24\ns_mul_i32 s%d, s26, %d\ns_add_u32 s%d, s%d, s%d\ns_add_u32 s%d, s%d, %d' % (sW2, 9 * SLOT, sW2, sW2, sM0, sW2, sW2, WS_W2))
    a('s_lshl_b32 s26, s20, 1\ns_add_u32 s26, s26, s25\ns_lshl_b32 s26, s26, 2\ns_add_u32 s26, s26, s%d' % sWV)
    a('s_mul_i32 s27, s26, %d\ns_mul_i32 s28, s21, %d\ns_add_u32 s27, s27, s28\ns_add_u32 s27, s27, %d' % (576 * 512, 8 * 18 * 512, WS_ACT))
    a('v_lshrrev_b32 v24, 1, v23\nv_mul_u32_u24 v24, %d, v24\nv_and_b32 v25, 1, v23\nv_lshl_add_u32 v24, v25, 9, v24\nv_lshl_add_u32 v24, v22, 4, v24' % (18 * 512))
    a('v_add_u32 v%d, s27, v24' % vAL)
    a('s_mul_i32 s27, s21, %d\ns_mul_i32 s28, s24, %d\ns_add_u32 s27, s27, s28\ns_lshl_b32 s28, s26, 9\ns_add_u32 s27, s27, s28\ns_add_u32 s27, s27, %d' % (XBYTES, 18 * 32768, WS_PART))
    a('v_lshlrev_b32 v24, 15, v23\nv_lshl_add_u32 v24, v22, 4, v24\nv_add_u32 v%d, s27, v24' % vPO)
    a('s_add_u32 s27, s27, %d' % (16 * 32768))
    a('v_lshlrev_b32 v24, 15, v25\nv_lshl_add_u32 v24, v22, 4, v24\nv_lshrrev_b32 v25, 1, v23\nv_lshl_add_u32 v24, v25, 8, v24\nv_add_u32 v%d, s27, v24' % vP8)

def dma_items(slot, first, sbase, pol=''):
    pos = slot % 4; rel = slot - first
    out = []
    for i in range(9):
        pre = []
        if i % 4 == 0:
            pre = ['s_add_u32 m0, s%d, %d' % (sM0, pos * SLOT + i * 1024), 's_add_u32 s%d, s%d, %d' % (sTA, sbase, rel * SLOT + i * 1024)]
        out.append(('buffer_load_dwordx4 v%d, s[8:11], s%d offen offset:%d %slds' % (vLANE16, sTA, (i % 4) * 1024, pol), pre, 'dma%d' % slot))
    return out

def hload_items(kk):
    out = []
    for sub in range(4):
        pre = ['s_mov_b32 s%d, %d' % (sTB, kk * 131072)] if sub == 0 else []
        out.append(('buffer_load_dwordx4 %s, v%d, s[8:11], s%d offen offset:%d' % (hreg(4 * kk + sub), vH, sTB, sub * 256), pre, 'h%d' % kk))
    return out

def aload_items(c, reg0, pol=''):
    out = []
    for pr in range(4):
        for sub in range(2):
            pre = ['s_mov_b32 s%d, %d' % (sTB, pr * 36 * 512 + c * 1024)] if sub == 0 else []
            out.append(('buffer_load_dwordx4 %s, v%d, s[8:11], s%d offen offset:%d %s' % (hreg(reg0 + 2 * pr + sub), vAL, sTB, sub * 256, pol), pre, 'al%d' % c))
    return out

def accreg(c, mat, sub): return vACC + 32 * (c % 4) + 16 * mat + 4 * sub

def sig_items(c):
    out = []
    for sub in range(4):
        G = accreg(c, 0, sub); T = vT + 4 * (sub % 2)
        out += [('v_mul_f32 v%d, v%d, v%d' % (T + j, vC1 + sub, G + j), 1) for j in range(4)]
        out += [('v_exp_f32 v%d, v%d' % (T + j, T + j), 2) for j in range(4)]
        out += [('v_fma_f32 v%d, v%d, v%d, v%d' % (T + j, T + j, vS2 + sub, vS2 + sub), 1) for j in range(4)]
        out += [('v_rcp_f32 v%d, v%d' % (T + j, T + j), 2) for j in range(4)]
        out += [('v_mul_f32 v%d, v%d, v%d' % (G + j, T + j, G + j), 1) for j in range(4)]
    return out

def fin_items(c, pol=''):
    out = []
    for pair in range(2):
        P = vPK + 4 * pair
        for s in range(2):
            sub = 2 * pair + s
            G = accreg(c, 0, sub); U = accreg(c, 1, sub)
            out += [('v_mul_f32 v%d, v%d, v%d' % (G + j, G + j, U + j), 1, None, None) for j in range(4)]
        for s in range(2):
            G = accreg(c, 0, 2 * pair + s)
            out += [('v_cvt_pk_bf16_f32 v%d, v%d, v%d' % (P + 2 * s + j, G + 2 * j, G + 2 * j + 1), 1, None, None) for j in range(2)]
    for pair in range(2):
        P = vPK + 4 * pair
        out += [('v_permlane16_swap_b32 v%d, v%d' % (P + j, P + 2 + j), 1, None, None) for j in range(2)]
    for pair in range(2):
        P = vPK + 4 * pair
        out.append(('buffer_store_dwordx4 %s, v%d, s[8:11], s%d offen %s' % (vr(P, 4), vAS, sTC, pol), 1, 'as%d' % c, ['s_mov_b32 s%d, %d' % (sTC, c * 1024 + pair * 576 * 512)]))
    return out

def stat_items():
    out = []
    for sub in range(4):
        out.append(('v_cndmask_b32 v%d, 0, v%d, s[30:31]' % (vS2 + sub, vGR + 4 * sub), 1))
    for j in range(1, 4):
        for sub in range(4):
            out.append(('v_cndmask_b32 v%d, v%d, v%d, s[%d:%d]' % (vS2 + sub, vS2 + sub, vGR + 4 * sub + j, 30 + 2 * j, 31 + 2 * j), 1))
    for sw in ('v_permlane16_swap_b32', 'v_permlane32_swap_b32'):
        for sub in range(4): out.append(('v_mov_b32 v%d, v%d' % (vC1 + sub, vS2 + sub), 1))
        for sub in range(4): out.append(('%s v%d, v%d' % (sw, vC1 + sub, vS2 + sub), 1))
        for sub in range(4): out.append(('v_add_f32 v%d, v%d, v%d' % (vS2 + sub, vS2 + sub, vC1 + sub), 1))
    for sub in range(4): out.append(('v_fma_f32 v%d, v%d, s38, v11' % (vS2 + sub, vS2 + sub), 1))
    for sub in range(4): out.append(('v_rsq_f32 v%d, v%d' % (vC1 + sub, vS2 + sub), 2))
    for sub in range(4): out.append(('v_mul_f32 v%d, %s, v%d' % (vC1 + sub, f2u(-LOG2E), vC1 + sub), 1))
    return out

def stat_setup(a):
    a('v_lshlrev_b32 v24, 2, v23\nv_sub_u32 v24, v22, v24')
    for j in range(4): a('v_cmp_eq_u32 s[%d:%d], %d, v24' % (30 + 2 * j, 31 + 2 * j, j))
    a('s_mov_b32 s38, %s' % f2u(1.0 / 576))
    a('v_mov_b32 v11, %s' % f2u(1e-5))

def run_groups(a, sc, groups, nslots_total, dma_for, hooks):
    def frag_reg(gi, k, n): return vFR + 16 * (gi % 2) + 4 * k
    def reads(gi):
        g = groups[gi]
        return ['ds_read_b128 %s, v%d offset:%d' % (vr(frag_reg(gi, k, 0), 4), vL[g['slot'] % 4], fi * 1024) for k, fi in enumerate(g['frags'])]
    a.wait_tag('dma%d' % groups[0]['slot']); a('s_barrier')
    for r in reads(0): a(r)
    for gi, g in enumerate(groups):
        nxt = groups[gi + 1] if gi + 1 < len(groups) else None
        seq = list(g.get('extra', []))
        for (acc, k, b, first) in g['mf']:
            seq.append('v_mfma_f32_16x16x32_bf16 %s, %s, %s, %s' % (vr(acc, 4), vr(frag_reg(gi, k, 0), 4), b, '0' if first else vr(acc, 4)))
        if ('begin', gi) in hooks: hooks[('begin', gi)]()
        for mi, m in enumerate(seq):
            scalar = None
            if mi == 0 and nxt is not None:
                def scalar(g=g, nxt=nxt, gi=gi):
                    if nxt['slot'] != g['slot']:
                        assert not any(it[2] == 'dma%d' % nxt['slot'] for q in (sc.hi, sc.lo, sc.mem) for it in q)
                        prewait(a, vr(frag_reg(gi, 0, 0), 16))
                        a.wait_tag('dma%d' % nxt['slot'])
                        if not (NOBAR and sc.n > 504): a('s_barrier')
                    rd = reads(gi + 1)
                    for r in reversed(rd): sc.hi.appendleft((r, 1, None, [], 0))
                    if nxt['slot'] != g['slot'] and g['slot'] + 4 < nslots_total:
                        for (t, pre, tag) in dma_for(g['slot'] + 4): sc.push(sc.mem, t, 1, tag, pre)
            elif mi == len(seq) - 1 and nxt is not None:
                def scalar(gi=gi): prewait(a, vr(frag_reg(gi + 1, 0, 0), 16))
            sc.mfma(m, scalar)
        if ('end', gi) in hooks: hooks[('end', gi)]()

def g1_groups():
    groups = []
    for s, fr in enumerate(w1_frag_list()):
        for g0 in range(0, 36, 3):
            c, mat, kk0 = fr[g0]
            mf = [(accreg(c, mat, sub), l, hreg(4 * (kk0 + l) + sub), kk0 + l == 0) for sub in range(4) for l in range(3)]
            g = dict(slot=s, frags=[g0, g0 + 1, g0 + 2], mf=mf, c=c, mat=mat, kk0=kk0)
            if s < 3 and c == 0 and mat == 0:
                g['extra'] = ['v_mfma_f32_16x16x32_bf16 %s, %s, %s, %s' % (vr(vGR + 4 * sub, 4), hreg(4 * (kk0 + l) + sub), hreg(4 * (kk0 + l) + sub), '0' if kk0 + l == 0 else vr(vGR + 4 * sub, 4))
                              for sub in range(4) for l in range(3)]
            groups.append(g)
    return groups

OACC = [vACC + 32 + 4 * i for i in range(16)] + [vGR, vGR + 4]
def g2_groups(slot0, breg0):
    groups = []
    for c in range(9):
        for t in range(9):
            mf = [(OACC[2 * t + sub], pr, hreg(breg0(c) + 2 * pr + sub), c == 0 and pr == 0) for sub in range(2) for pr in range(4)]
            groups.append(dict(slot=slot0 + c, frags=[4 * t + pr for pr in range(4)], mf=mf, c=c, t=t))
    return groups

def g2_epilogue(a, pol=''):
    T = [vT, vT + 4, vT + 8, vT + 12]
    n = 0
    for u in range(4):
        a('s_mov_b32 s%d, %d' % (sTC, u * 4 * 32768))
        for sub in range(2):
            P = T[n % 4]; n += 1
            for h in range(2):
                O = OACC[2 * (2 * u + h) + sub]
                for j in range(2): a('v_cvt_pk_bf16_f32 v%d, v%d, v%d' % (P + 2 * h + j, O + 2 * j, O + 2 * j + 1))
            a('buffer_store_dwordx4 %s, v%d, s[8:11], s%d offen offset:%d %s' % (vr(P, 4), vPO, sTC, sub * 256, pol))
    P = T[n % 4]
    for sub in range(2):
        O = OACC[16 + sub]
        for j in range(2): a('v_cvt_pk_bf16_f32 v%d, v%d, v%d' % (P + 2 * sub + j, O + 2 * j, O + 2 * j + 1))
    for j in range(2): a('v_permlane32_swap_b32 v%d, v%d' % (P + j, P + 2 + j))
    a('buffer_store_dwordx4 %s, v%d, s[8:11], 0 offen %s' % (vr(P, 4), vP8, pol))

def emit_now(a, items):
    for (t, pre, tag) in items:
        for p in pre: a(p)
        a(t, tag)

def gemm1_kernel(a, name, st=False, idx=0):
    common_prologue(a, name, st)
    g1_setup(a)
    dma_for = lambda s: dma_items(s, 0, sW1)
    H = lambda k0, k1: sum([hload_items(kk) for kk in range(k0, k1)], [])
    d1 = dma_for(1); d2 = dma_for(2); d3 = dma_for(3)
    order = dma_for(0) + H(0, 6) + d1 + H(6, 9) + d2[:4] + H(9, 12) + d2[4:] + H(12, 15) + d3[:4] + H(15, 18) + d3[4:]
    emit_now(a, order[:NPRE])
    stat_setup(a)
    sc = Sched(a); sc.gap = GAP1
    groups = g1_groups()
    hooks = {}
    def first():
        stamp(a, 1, st)
        for k, (t, pre, tag) in enumerate(order[NPRE:]): sc.push(sc.mem, t, 1, tag, pre)
    hooks[('begin', 0)] = first
    for gi, g in enumerate(groups):
        if g['kk0'] == 15:
            def h(g=g):
                n = sc.n + 4
                if g['c'] == 0 and g['mat'] == 0:
                    for (t, c) in stat_items(): sc.push(sc.lo, t, c, after=n)
                if g['slot'] >= 3:
                    if g['mat'] == 0:
                        for (t, c) in sig_items(g['c']): sc.push(sc.lo, t, c, after=n)
                    else:
                        for (t, c, tag, pre) in fin_items(g['c']): sc.push(sc.lo, t, c, tag, pre, after=n)
                elif g['mat'] == 0 and g['c'] == 0:
                    for (t, c) in sig_items(0): sc.push(sc.lo, t, c, after=n)
                elif g['mat'] == 1:
                    if g['c'] > 0:
                        for (t, c) in sig_items(g['c']): sc.push(sc.lo, t, c, after=n)
                    for (t, c, tag, pre) in fin_items(g['c']): sc.push(sc.lo, t, c, tag, pre, after=n)
                    if g['c'] == 2: stamp(a, 2, st); sc.gap = GAP2
            hooks[('end', gi)] = h
        if g['kk0'] == 0 and g['slot'] >= 4:
            def chk(g=g):
                regs = set(('v', r) for r in range(accreg(g['c'], g['mat'], 0), accreg(g['c'], g['mat'], 0) + 16))
                for it in sc.lo:
                    i = Ins(it[0])
                    assert not (regs & (i.uses | i.defs)), 'acc reuse conflict at chunk %d' % g['c']
            hooks[('begin', gi)] = chk
    run_groups(a, sc, groups, 9, dma_for, hooks)
    stamp(a, 3, st)
    sc.drain(sc.hi); sc.drain(sc.mem); sc.drain(sc.lo)
    stamp(a, 4, st)
    stamp_out(a, 5, idx, st)
    a.label(name + '_end')
    a('s_endpgm')

def gemm2_kernel(a, name, st=False, idx=0):
    common_prologue(a, name, st)
    g2_setup(a)
    dma_for = lambda s: dma_items(s, 0, sW2)
    order = sum([dma_for(c) + aload_items(c, 8 * c) for c in range(4)], [])
    emit_now(a, order[:NPRE2])
    sc = Sched(a); sc.gap = GAP3
    for (t, pre, tag) in order[NPRE2:]: sc.push(sc.mem, t, 1, tag, pre)
    groups = g2_groups(0, lambda c: 8 * c)
    hooks = {}
    for gi, g in enumerate(groups):
        if g['t'] == 0:
            def h(g=g):
                if g['c'] == 0: stamp(a, 1, st)
                if g['c'] == 3: stamp(a, 2, st)
                if 0 < g['c'] and g['c'] + 3 < 9:
                    for k, (t, pre, tag) in enumerate(aload_items(g['c'] + 3, 8 * (g['c'] + 3))): sc.push(sc.mem, t, 1, tag, pre)
            hooks[('begin', gi)] = h
    run_groups(a, sc, groups, 9, dma_for, hooks)
    stamp(a, 3, st)
    g2_epilogue(a)
    stamp(a, 4, st)
    stamp_out(a, 5, idx, st)
    a.label(name + '_end')
    a('s_endpgm')

if __name__ == '__main__':
    import sys
    st = True
    for kv in sys.argv[2:]:
        k_, v_ = kv.split('='); globals()[k_] = int(v_)
    a = Asm()
    gemm1_kernel(a, 'g1_kernel', st, 0)
    print('g1 instrs', a.n_ins, 'nops', a.nops)
    gemm2_kernel(a, 'g2_kernel', st, 1)
    print('total instrs', a.n_ins, 'nops', a.nops)
    L = [('g1_kernel', 256, 256, 4 * SLOT), ('g2_kernel', 256, 256, 4 * SLOT)]
    descs = [kernel_desc(k, 512, accum=256) for k in ('g1_kernel', 'g2_kernel')]
    open(sys.argv[1], 'w').write(file_text(L, a.text(), descs))
```

```python
from ab import *
from layout import *
from ffn import f2u, SLOT
import math
import ffn

sST = 60
def stamp(a, k, on):
    if on:
        a('s_memtime %s' % sr(sST + 2 * k, 2))
        a('s_memrealtime %s' % sr(sST + 16 + 2 * k, 2))
def stamp_begin(a, on):
    if on:
        a('s_memrealtime %s' % sr(sST - 2, 2)); stamp(a, 0, on)
def stamp_out(a, nst, idx, on, swave, srd):
    if not on: return
    lab = 'L_st_%d' % len(a.out)
    a('s_memrealtime %s' % sr(sST + 2 * nst, 2))
    a.wait_all(force=True)
    a('s_cmp_ge_u32 s%d, 4\ns_cbranch_scc1 %s' % (swave, lab))
    a('s_cmp_ge_u32 s2, 256\ns_cbranch_scc1 %s' % lab)
    a('s_lshl_b32 s56, s2, 10\ns_lshl_b32 s57, s%d, 8\ns_add_u32 s56, s56, s57\ns_add_u32 s56, s56, %d' % (swave, WS_STAMP + idx * 262144))
    a('s_mov_b64 exec, 1')
    a('v_mov_b32 v1, 0')
    for k in range(-1, nst + 1):
        a('v_mov_b32 v2, s%d\nv_mov_b32 v3, s%d' % (sST + 2 * k, sST + 2 * k + 1))
        a('buffer_store_dwordx2 v[2:3], v1, %s, s56 offen offset:%d' % (srd, 8 * (k + 1)))
        a('s_nop 1')
    for k in range(nst):
        a('v_mov_b32 v2, s%d\nv_mov_b32 v3, s%d' % (sST + 16 + 2 * k, sST + 17 + 2 * k))
        a('buffer_store_dwordx2 v[2:3], v1, %s, s56 offen offset:%d' % (srd, 8 * (13 + k)))
        a('s_nop 1')
    a.label(lab)

def srd(a, d, p, nbytes):
    a('s_mov_b32 s%d, s%d\ns_mov_b32 s%d, s%d\ns_mov_b32 s%d, %d\ns_mov_b32 s%d, 0x20000' % (d, p, d + 1, p + 1, d + 2, nbytes, d + 3))

def repack_body(a, name, stask, swave, ldsbase):
    a('s_load_dwordx4 s[4:7], s[0:1], 48')
    a('s_load_dwordx2 s[12:13], s[0:1], 64')
    a('s_load_dwordx2 s[14:15], s[0:1], 88')
    a('v_and_b32 v1, 63, v0')
    for i in range(9):
        a('v_add_u32 v2, %d, v1' % (64 * i))
        a('v_mul_u32_u24 v3, 3641, v2\nv_lshrrev_b32 v3, 16, v3')
        a('v_mul_u32_u24 v4, 18, v3\nv_sub_u32 v%d, v2, v4' % (20 + i))
        a('v_mov_b32 v%d, v3' % (10 + i))
    a('s_cmp_lt_u32 s%d, 288' % stask)
    a('s_waitcnt lgkmcnt(0)')
    a('s_mov_b32 s16, s14\ns_mov_b32 s17, s15\ns_mov_b32 s18, 0x10000000\ns_mov_b32 s19, 0x20000')
    a('s_mov_b32 s10, %d\ns_mov_b32 s11, 0x20000' % (D * F * 2))
    a('v_lshrrev_b32 v2, 5, v1\nv_lshlrev_b32 v2, 4, v2\nv_bfe_u32 v3, v1, 2, 3\nv_add_u32 v2, v2, v3')
    a('v_mul_u32_u24 v2, 288, v2\nv_add_u32 v2, s%d, v2' % ldsbase)
    a('v_and_b32 v3, 3, v1\nv_lshlrev_b32 v4, 3, v3')
    a('v_add_u32 v5, v2, v4')
    a('v_lshlrev_b32 v8, 4, v1')
    a('s_mov_b32 m0, s%d' % ldsbase)
    a.fence()
    st = a.state()
    a('s_cbranch_scc0 %s_w2' % name)
    a('s_cmp_ge_u32 s%d, 144' % stask)
    a('s_cselect_b32 s8, s6, s4\ns_cselect_b32 s9, s7, s5\ns_cselect_b32 s20, 1, 0\ns_cselect_b32 s21, 144, 0')
    a('s_sub_u32 s21, s%d, s21\ns_lshr_b32 s22, s21, 3\ns_and_b32 s21, s21, 7\ns_lshl_b32 s21, s21, 2\ns_add_u32 s21, s21, s%d' % (stask, swave))
    a('s_lshl_b32 s23, s22, 4\ns_mul_i32 s24, s21, 288\ns_movk_i32 s25, 9216')
    for i in range(9):
        R = 10 + i
        a('v_lshrrev_b32 v30, 4, v%d\nv_lshlrev_b32 v30, 3, v30\nv_and_b32 v31, 4, v%d\nv_add3_u32 v30, v30, v31, s23' % (R, R))
        a('v_sub_u32 v31, 572, v30\nv_and_b32 v32, 8, v%d\nv_cmp_eq_u32 vcc, 0, v32\nv_and_b32 v32, 3, v%d' % (R, R))
        a('v_cndmask_b32 v30, v31, v30, vcc\nv_add_u32 v30, v30, v32')
        a('v_lshlrev_b32 v31, 4, v%d\nv_mad_u32_u24 v30, v30, s25, v31' % (20 + i))
        if i: a('s_add_u32 m0, m0, 1024')
        a('buffer_load_dwordx4 v30, s[8:11], s24 offen lds')
    a('s_mul_i32 s26, s21, %d' % (9 * SLOT))
    if WS_W1: a('s_add_u32 s26, s26, %d' % WS_W1)
    a('s_mul_i32 s27, s22, 43\ns_lshr_b32 s27, s27, 7\ns_mul_i32 s28, s27, 3\ns_sub_u32 s28, s22, s28')
    a('s_mul_i32 s27, s27, 18\ns_mul_i32 s29, s20, 9\ns_add_u32 s27, s27, s29\ns_add_u32 s27, s27, s28\ns_lshl_b32 s27, s27, 10\ns_add_u32 s27, s27, s26')
    a('s_mul_i32 s29, s20, 18\ns_add_u32 s29, s29, s22\ns_lshl_b32 s29, s29, 10\ns_add_u32 s29, s29, s26')
    a.wait_all(force=True)
    for c in range(9):
        for h in range(2):
            a('ds_read_b64_tr_b16 %s, v5 offset:%d' % (vr(20 + 4 * c + 2 * h, 2), 32 * c + h * 8 * 288))
    for c in range(9):
        a('s_add_u32 s30, s%d, %d' % ((27, c * 3072) if c < 3 else (29, c * SLOT)))
        a('buffer_store_dwordx4 %s, v8, s[16:19], s30 offen' % vr(20 + 4 * c, 4))
    a('s_branch %s_done' % name)
    a.restore(st)
    a.label(name + '_w2')
    a('s_mov_b32 s8, s12\ns_mov_b32 s9, s13')
    a('s_sub_u32 s20, s%d, 288\ns_and_b32 s21, s20, 3\ns_lshr_b32 s20, s20, 2' % stask)
    a('s_mul_i32 s22, s20, 57\ns_lshr_b32 s22, s22, 9\ns_mul_i32 s23, s22, 9\ns_sub_u32 s23, s20, s23')
    a('s_lshl_b32 s24, s22, 2\ns_add_u32 s24, s24, s21\ns_mul_i32 s24, s24, 288\ns_lshl_b32 s25, s23, 4\ns_add_u32 s24, s24, s25\ns_mul_i32 s24, s24, 1152')
    a('s_mul_i32 s25, s%d, 144\ns_sub_u32 s26, %d, s25\ns_movk_i32 s27, 1152' % (swave, 1008 - 144))
    a('v_mov_b32 v33, s25\nv_mov_b32 v34, s26')
    for i in range(9):
        R = 10 + i
        a('v_lshrrev_b32 v30, 4, v%d\nv_mul_u32_u24 v30, 144, v30\nv_and_b32 v31, 4, v%d\nv_lshl_add_u32 v30, v31, 1, v30' % (R, R))
        a('v_cmp_gt_u32 vcc, 9, v%d\nv_bfe_u32 v31, v%d, 3, 1\nv_lshl_add_u32 v30, v31, 2, v30\nv_and_b32 v31, 3, v%d\nv_add_u32 v30, v30, v31' % (20 + i, R, R))
        a('v_cndmask_b32 v31, v34, v33, vcc\nv_lshl_add_u32 v31, v%d, 4, v31\nv_mad_u32_u24 v30, v30, s27, v31' % (20 + i))
        if i: a('s_add_u32 m0, m0, 1024')
        a('buffer_load_dwordx4 v30, s[8:11], s24 offen lds')
    a('v_sub_u32 v6, v2, v4\nv_add_u32 v6, 184, v6')
    a('v_cmp_gt_u32 vcc, 2, v3\nv_add_u32 v30, 128, v5\nv_subrev_u32 v31, 16, v6\nv_cndmask_b32 v7, v31, v30, vcc')
    a('s_lshl_b32 s26, s22, 2\ns_add_u32 s26, s26, s%d\ns_mul_i32 s26, s26, 9\ns_add_u32 s26, s26, s23\ns_mul_i32 s26, s26, %d\ns_lshl_b32 s27, s21, 10\ns_add_u32 s26, s26, s27\ns_add_u32 s26, s26, %d' % (swave, SLOT, WS_W2))
    a.wait_all(force=True)
    for t in range(9):
        for h in range(2):
            if t == 8: ad, off = 7, 0
            elif t % 2 == 0: ad, off = 5, 32 * (t // 2)
            else: ad, off = 6, 32 * (3 - t // 2)
            a('ds_read_b64_tr_b16 %s, v%d offset:%d' % (vr(20 + 4 * t + 2 * h, 2), ad, off + h * 8 * 288))
    for t in range(9):
        a('s_add_u32 s30, s26, %d' % (t * 4096))
        a('buffer_store_dwordx4 %s, v8, s[16:19], s30 offen' % vr(20 + 4 * t, 4))
    a.label(name + '_done')
    a.reset()

def repack_kernel(a, name, st=False, idx=0):
    kernel_begin(a, name)
    stamp_begin(a, st)
    a('s_cmp_ge_u32 s2, 432\ns_cbranch_scc1 %s_end' % name)
    a('v_lshrrev_b32 v1, 6, v0\nv_readfirstlane_b32 s3, v1\ns_mul_i32 s41, s3, 9216')
    repack_body(a, name, 2, 3, 41)
    stamp(a, 1, st); stamp(a, 2, st); stamp(a, 3, st); stamp(a, 4, st)
    stamp_out(a, 5, idx, st, 3, 's[16:19]')
    a.label(name + '_end')
    a('s_endpgm')

TS = 1312; RS = 144
L_H = 0; L_STAT = 10752; L_Z = 12288; K1_LDS = 12288 + 290 * 32

def rows_head(a, name, layer, st, final=False):
    kernel_begin(a, name)
    stamp_begin(a, st)
    a('s_load_dwordx2 s[4:5], s[0:1], 88')
    a('s_load_dwordx2 s[6:7], s[0:1], %d' % (72 if final else 0))
    a('s_cmp_ge_u32 s2, 256\ns_cbranch_scc1 %s_end' % name)
    a('v_lshrrev_b32 v1, 6, v0\nv_and_b32 v2, 7, v0\nv_readfirstlane_b32 s3, v1\nv_lshrrev_b32 v3, 3, v0\nv_and_b32 v1, 63, v0')
    a('s_and_b32 s20, s2, 3\ns_bfe_u32 s21, s2, 0x10002\ns_lshr_b32 s22, s2, 7\ns_lshl_b32 s22, s22, 1\ns_add_u32 s21, s21, s22\ns_bfe_u32 s22, s2, 0x40003')
    a('s_lshl_b32 s23, s22, 2\ns_add_u32 s23, s23, s21\ns_lshl_b32 s24, s23, 5\ns_lshl_b32 s25, s20, 3\ns_add_u32 s24, s24, s25')
    a('v_lshlrev_b32 v4, 11, v3\nv_add3_u32 v4, v4, v2, s24\nv_lshlrev_b32 v4, 4, v4')
    if layer == 0 or final:
        a('v_add_u32 v5, s25, v2\nv_lshlrev_b32 v5, 6, v5\nv_add_u32 v5, s23, v5\nv_mul_u32_u24 v5, 1152, v5')
        a('v_lshlrev_b32 v7, 3, v3\nv_sub_u32 v6, v5, v7\nv_add_u32 v5, v5, v7')
    a('s_waitcnt lgkmcnt(0)')
    srd(a, 8, 4, 0x10000000)
    if layer == 0 or final: srd(a, 12, 6, S * D * 2)
    if layer == 0:
        a('buffer_load_dwordx2 v[8:9], v5, s[12:15], 0 offen')
        a('buffer_load_dwordx2 v[10:11], v6, s[12:15], 0 offen offset:1144')
    else:
        for k, off in enumerate([WS_X1] + [WS_PART + q * XBYTES for q in range(4)]):
            a('s_mov_b32 s26, %d' % off)
            a('buffer_load_dwordx4 %s, v4, s[8:11], s26 offen' % vr(8 + 4 * k, 4))

def rows_sum(a, layer, X):
    for k in range(1 if layer == 0 else 5):
        T = X if k == 0 else 36
        for j in range(4):
            a('v_lshlrev_b32 v%d, 16, v%d\nv_and_b32 v%d, 0xffff0000, v%d' % (T + 2 * j, 8 + 4 * k + j, T + 2 * j + 1, 8 + 4 * k + j))
        if k:
            for j in range(4): a('v_pk_add_f32 %s, %s, %s' % (vr(X + 2 * j, 2), vr(X + 2 * j, 2), vr(T + 2 * j, 2)))

def k4_kernel(a, name, st=False, idx=0):
    rows_head(a, name, 1, st, final=True)
    a('v_add_u32 v7, s24, v2\nv_lshlrev_b32 v7, 2, v7')
    for k in range(4):
        a('s_mov_b32 s26, %d' % (WS_MU + k * 8192))
        a('buffer_load_dword v%d, v7, s[8:11], s26 offen' % (44 + k))
    stamp(a, 1, st)
    rows_sum(a, 1, 28)
    stamp(a, 2, st)
    a('v_add_f32 v44, v44, v45\nv_add_f32 v46, v46, v47\nv_sub_f32 v44, v44, v46')
    for j in range(4): a('v_pk_add_f32 %s, %s, v[44:45] op_sel_hi:[1,0]' % (vr(28 + 2 * j, 2), vr(28 + 2 * j, 2)))
    for j in range(4): a('v_cvt_pk_bf16_f32 v%d, v%d, v%d' % (8 + j, 28 + 2 * j, 29 + 2 * j))
    a('buffer_store_dwordx2 v[8:9], v5, s[12:15], 0 offen')
    a('buffer_store_dwordx2 v[10:11], v6, s[12:15], 0 offen offset:1144')
    stamp(a, 3, st); stamp(a, 4, st)
    stamp_out(a, 5, idx, st, 3, 's[8:11]')
    a.label(name + '_end')
    a('s_endpgm')

def dft3(a, x0, x1, x2, y0, y1, y2, T, sC):
    a('v_add_f32 v%d, v%d, v%d\nv_add_f32 v%d, v%d, v%d' % (T, x1[0], x2[0], T + 1, x1[1], x2[1]))
    a('v_sub_f32 v%d, v%d, v%d\nv_sub_f32 v%d, v%d, v%d' % (T + 2, x1[0], x2[0], T + 3, x1[1], x2[1]))
    a('v_fma_f32 v%d, v%d, -0.5, v%d\nv_fma_f32 v%d, v%d, -0.5, v%d' % (T + 4, T, x0[0], T + 5, T + 1, x0[1]))
    a('v_add_f32 v%d, v%d, v%d\nv_add_f32 v%d, v%d, v%d' % (y0[0], x0[0], T, y0[1], x0[1], T + 1))
    a('v_fma_f32 v%d, v%d, s%d, v%d\nv_fma_f32 v%d, -v%d, s%d, v%d' % (y1[0], T + 3, sC, T + 4, y1[1], T + 2, sC, T + 5))
    a('v_fma_f32 v%d, -v%d, s%d, v%d\nv_fma_f32 v%d, v%d, s%d, v%d' % (y2[0], T + 3, sC, T + 4, y2[1], T + 2, sC, T + 5))

def k1_kernel(a, name, layer, st=False, idx=0):
    rows_head(a, name, layer, st)
    X = 28
    AD = 44
    BT = 52
    ZA = 68
    AA = 77
    a('v_mul_u32_u24 v36, %d, v2' % TS)
    a('v_lshlrev_b32 v37, 2, v3\nv_sub_u32 v38, 572, v37')
    a('s_movk_i32 s27, %d' % RS)
    for half in range(2):
        d0 = 37 + half
        a('v_mul_u32_u24 v39, 7282, v%d\nv_lshrrev_b32 v39, 16, v39\nv_mul_u32_u24 v39, 9, v39\nv_sub_u32 v39, v%d, v39' % (d0, d0))
        a('v_and_b32 v40, 63, v%d\nv_lshl_add_u32 v40, v40, 1, v36' % d0)
        for i in range(4):
            if i:
                a('v_add_u32 v41, %d, v39\nv_add_u32 v42, %d, v39\nv_min_u32 v41, v41, v42' % (i, i - 9))
                a('v_mad_u32_u24 v%d, v41, s27, v40' % (AD + 4 * half + i))
            else:
                a('v_mad_u32_u24 v%d, v39, s27, v40' % (AD + 4 * half))
    a('v_cmp_ne_u32 s[28:29], 0, v3')
    a('v_and_b32 v36, 15, v1\nv_lshrrev_b32 v37, 4, v1')
    a('s_and_b32 s30, s3, 1\ns_lshr_b32 s31, s3, 1\ns_lshl_b32 s31, s31, 4\ns_lshl_b32 s32, s30, 2')
    a('v_add_u32 v38, s31, v36')
    a('v_cvt_f32_u32 v39, v38\nv_mul_f32 v39, %s, v39' % f2u(1 / 64.))
    a('v_lshlrev_b32 v40, 3, v37\nv_cvt_f32_u32 v40, v40\nv_mul_f32 v40, v40, v39')
    for kk in range(2):
        for i2 in range(4):
            for u in range(2):
                a('v_fmamk_f32 v%d, v39, %s, v40' % (41 + u, f2u(32 * kk + 2 * i2 + u)))
            a('v_cos_f32 v78, v41\nv_cos_f32 v79, v42\nv_sin_f32 v80, v41\nv_sin_f32 v81, v42')
            a('v_cvt_pk_f16_f32 v%d, v78, v79\nv_cvt_pk_f16_f32 v%d, -v80, -v81' % (BT + 8 * kk + i2, BT + 8 * kk + 4 + i2))
    a('v_mul_u32_u24 v39, 9, v38\nv_add_u32 v40, s32, v37\nv_lshlrev_b32 v40, 2, v40\nv_add_u32 v40, %d, v40' % L_Z)
    a('s_movk_i32 s33, 288')
    for e2 in range(9):
        a('v_add_u32 v41, %d, v39\nv_add_u32 v42, %d, v39\nv_min_u32 v41, v41, v42' % (64 * e2, (64 * e2 - 576) & 0xffffffff))
        a('v_sub_u32 v42, 576, v41\nv_cmp_lt_u32 s[%d:%d], s33, v41\nv_min_u32 v41, v41, v42\nv_lshl_add_u32 v%d, v41, 5, v40' % (34 + 2 * e2, 35 + 2 * e2, ZA + e2))
    a('v_cmp_ge_u32 s[52:53], 32, v38')
    a('v_lshrrev_b32 v39, 2, v36\nv_add_u32 v39, s32, v39\nv_mul_u32_u24 v39, %d, v39\nv_and_b32 v40, 3, v36\nv_mad_u32_u24 v39, v40, s27, v39\nv_lshl_add_u32 v%d, v37, 4, v39' % (TS, AA))
    a('v_lshlrev_b32 v82, 3, v2\ns_lshl_b32 s26, s3, 6\nv_add_u32 v83, s26, v82')
    stamp(a, 1, st)
    rows_sum(a, layer, X)
    a('v_pk_add_f32 v[36:37], v[%d:%d], v[%d:%d]\nv_pk_add_f32 v[38:39], v[%d:%d], v[%d:%d]' % (X, X + 1, X + 2, X + 3, X + 4, X + 5, X + 6, X + 7))
    a('v_pk_mul_f32 v[40:41], v[%d:%d], v[%d:%d]' % (X, X + 1, X, X + 1))
    a('v_pk_add_f32 v[36:37], v[36:37], v[38:39]')
    for j in range(1, 4): a('v_pk_fma_f32 v[40:41], %s, %s, v[40:41]' % (vr(X + 2 * j, 2), vr(X + 2 * j, 2)))
    a('v_add_f32 v36, v36, v37\nv_add_f32 v37, v40, v41')
    a('v_add_f32_dpp v36, v36, v36 row_ror:8 row_mask:0xf bank_mask:0xf\nv_add_f32_dpp v37, v37, v37 row_ror:8 row_mask:0xf bank_mask:0xf')
    for sw in ('v_permlane16_swap_b32', 'v_permlane32_swap_b32'):
        a('v_mov_b32 v38, v36\nv_mov_b32 v39, v37')
        a('%s v38, v36\n%s v39, v37' % (sw, sw))
        a('v_pk_add_f32 v[36:37], v[36:37], v[38:39]')
    a('ds_write_b64 v83, v[36:37] offset:%d' % L_STAT)
    a.wait_all(vm=False); a('s_barrier')
    for w in range(9): a('ds_read_b64 %s, v82 offset:%d' % (vr(8 + 2 * w, 2), L_STAT + 64 * w))
    for w in (0, 2, 4, 6): a('v_pk_add_f32 %s, %s, %s' % (vr(8 + 2 * w, 2), vr(8 + 2 * w, 2), vr(10 + 2 * w, 2)))
    a('v_pk_add_f32 v[8:9], v[8:9], v[12:13]\nv_pk_add_f32 v[16:17], v[16:17], v[20:21]\nv_pk_add_f32 v[8:9], v[8:9], v[24:25]\nv_pk_add_f32 v[8:9], v[8:9], v[16:17]')
    a('v_mul_f32 v8, %s, v8\nv_mul_f32 v9, %s, v9' % (f2u(1 / 576.), f2u(1 / 576.)))
    a('v_fma_f32 v9, -v8, v8, v9\nv_max_f32 v9, 0, v9\nv_add_f32 v9, %s, v9\nv_rsq_f32 v10, v9' % f2u(1e-5))
    for j in range(4): a('v_pk_add_f32 %s, %s, v[8:9] op_sel_hi:[1,0] neg_lo:[0,1] neg_hi:[0,1]' % (vr(X + 2 * j, 2), vr(X + 2 * j, 2)))
    for j in range(4): a('v_pk_mul_f32 %s, %s, v[10:11] op_sel_hi:[1,0]' % (vr(12 + 2 * j, 2), vr(X + 2 * j, 2)))
    a('v_cndmask_b32 v12, 0, v12, s[28:29]')
    for j in range(4): a('v_cvt_pk_f16_f32 v%d, v%d, v%d' % (20 + j, 12 + 2 * j, 13 + 2 * j))
    for j in range(4):
        half, i = j // 2, 2 * (j % 2)
        a('ds_write_b16 v%d, v%d offset:%d' % (AD + 4 * half + i, 20 + j, L_H + 2 * i))
        a('ds_write_b16_d16_hi v%d, v%d offset:%d' % (AD + 4 * half + i + 1, 20 + j, L_H + 2 * i + 2))
    for j in range(4): a('v_cvt_pk_bf16_f32 v%d, v%d, v%d' % (24 + j, X + 2 * j, X + 1 + 2 * j))
    a('s_mov_b32 s26, %d' % WS_X0)
    a('buffer_store_dwordx4 v[24:27], v4, s[8:11], s26 offen')
    a('v_add_u32 v36, s24, v2\nv_lshlrev_b32 v36, 2, v36\nv_cndmask_b32 v36, v36, -1, s[28:29]')
    a('s_mov_b32 s26, %d' % (WS_MU + layer * 8192))
    a('s_cmp_eq_u32 s3, 0\ns_cbranch_scc0 %s_nomu' % name)
    a('buffer_store_dword v8, v36, s[8:11], s26 offen')
    a.label(name + '_nomu')
    a.wait_all(vm=False); a('s_barrier')
    stamp(a, 2, st)
    a('s_cmp_ge_u32 s3, 6\ns_cbranch_scc1 %s_skip' % name)
    st0 = a.state()
    AF = 8; RE = 84; IM = 96
    for t in range(3):
        for kk in range(2):
            a('ds_read_b128 %s, v%d offset:%d' % (vr(AF + 8 * t + 4 * kk, 4), AA, L_H + 3 * t * RS + 64 * kk))
    a('s_mov_b32 s26, %s' % f2u(math.sqrt(3) / 2))
    for t in range(3):
        for part, O in ((0, RE), (1, IM)):
            for kk in range(2):
                a('v_mfma_f32_16x16x32_f16 %s, %s, %s, %s' % (vr(O + 4 * t, 4), vr(AF + 8 * t + 4 * kk, 4), vr(BT + 8 * kk + 4 * part, 4), vr(O + 4 * t, 4) if kk else '0'))
    U = lambda t, b: (RE + 4 * t + b, IM + 4 * t + b)
    for b in range(3): dft3(a, U(0, b), U(1, b), U(2, b), U(0, b), U(1, b), U(2, b), 36 if b % 2 else 8, 26)
    for b in (1, 2):
        for c in (1, 2):
            ang = 2 * math.pi * b * c / 9
            r, i = U(c, b); T = 8 + 2 * (2 * (b - 1) + c - 1)
            a('v_mul_f32 v%d, %s, v%d\nv_mul_f32 v%d, %s, v%d' % (T, f2u(math.sin(ang)), i, T + 1, f2u(-math.sin(ang)), r))
            a('v_fmamk_f32 v%d, v%d, %s, v%d\nv_fmamk_f32 v%d, v%d, %s, v%d' % (r, r, f2u(math.cos(ang)), T, i, i, f2u(math.cos(ang)), T + 1))
    a('s_mov_b64 exec, s[52:53]')
    for c in range(3):
        dft3(a, U(c, 0), U(c, 1), U(c, 2), U(c, 0), U(c, 1), U(c, 2), 36 if c % 2 else 16, 26)
        for f in range(3):
            e2 = c + 3 * f; r, i = U(c, f)
            a('v_cndmask_b32 v%d, v%d, -v%d, s[%d:%d]' % (i, i, i, 34 + 2 * e2, 35 + 2 * e2))
        for f in range(3):
            r, i = U(c, f); a('v_cvt_pk_f16_f32 v%d, v%d, v%d' % (r, r, i))
        for f in range(3):
            a('ds_write_b32 v%d, v%d' % (ZA + c + 3 * f, U(c, f)[0]))
    a('s_mov_b64 exec, -1')
    a.wait_all(vm=False)
    a.fence()
    a.label(name + '_skip')
    a('s_barrier')
    stamp(a, 3, st)
    a('v_lshlrev_b32 v36, 4, v0')
    a('ds_read_b128 v[8:11], v36 offset:%d' % L_Z)
    a('ds_read_b128 v[12:15], v36 offset:%d' % (L_Z + 288 * 32))
    a('v_lshrrev_b32 v37, 1, v0\nv_lshlrev_b32 v37, 13, v37\nv_and_b32 v38, 16, v36\nv_add_u32 v37, v37, v38')
    a('s_lshl_b32 s26, s21, 11\ns_lshl_b32 s27, s20, 9\ns_add_u32 s26, s26, s27\ns_lshl_b32 s27, s22, 5\ns_add_u32 s26, s26, s27\ns_add_u32 s26, s26, %d' % WS_Z)
    a('buffer_store_dwordx4 v[8:11], v37, s[8:11], s26 offen')
    a('s_cmp_eq_u32 s3, 0\ns_cbranch_scc0 %s_fin' % name)
    a('s_add_u32 s26, s26, %d\ns_mov_b64 exec, 3' % (288 * 8192))
    a('buffer_store_dwordx4 v[12:15], v37, s[8:11], s26 offen')
    a('s_mov_b64 exec, -1')
    a.label(name + '_fin')
    a.reset()
    stamp(a, 4, st)
    stamp_out(a, 5, idx, st, 3, 's[8:11]')
    a.label(name + '_end')
    a('s_endpgm')

YN = 272; YW = 4352; K2_LDS = 5 * YW

def k2_kernel(a, name, layer, st=False, idx=0):
    kernel_begin(a, name)
    stamp_begin(a, st)
    a('s_load_dwordx2 s[4:5], s[0:1], 88')
    a('s_cmp_ge_u32 s2, 144\ns_cbranch_scc1 %s_end' % name)
    a('v_lshrrev_b32 v1, 6, v0\nv_and_b32 v2, 63, v0\nv_readfirstlane_b32 s3, v1')
    a('s_and_b32 s20, s2, 7\ns_mul_i32 s20, s20, 9\ns_lshr_b32 s21, s2, 4\ns_add_u32 s20, s20, s21\ns_bfe_u32 s21, s2, 0x10003')
    a('s_lshl_b32 s22, s20, 2\ns_add_u32 s22, s22, s3\ns_lshl_b32 s22, s22, 13\ns_add_u32 s22, s22, %d\ns_add_u32 s23, s22, 4096' % WS_Z)
    a('v_lshlrev_b32 v3, 5, v2')
    a('v_lshrrev_b32 v4, 5, v2\nv_lshlrev_b32 v4, 14, v4\nv_and_b32 v5, 31, v2\nv_lshl_add_u32 v4, v5, 4, v4')
    a('s_lshl_b32 s24, s21, 3\ns_lshl_b32 s25, s20, 15')
    for u in range(4):
        a('s_lshl_b32 s26, s3, 2\ns_add_u32 s26, s26, %d\ns_add_u32 s27, s26, s24\ns_sub_u32 s28, 40, s27\ns_cmp_lt_u32 s26, 8\ns_cselect_b32 s27, s27, s28\ns_cmp_eq_u32 s27, 32\ns_cselect_b32 s%d, 16, s27' % (u, 30 + u))
        a('s_lshl_b32 s27, s%d, 9\ns_add_u32 s%d, s27, s25' % (30 + u, 34 + u))
    a('s_waitcnt lgkmcnt(0)')
    srd(a, 8, 4, 0x10000000)
    ZF = 16
    for t in range(4):
        for kk in range(2):
            a('buffer_load_dwordx4 %s, v3, s[8:11], s%d offen offset:%d' % (vr(ZF + 8 * t + 4 * kk, 4), 22 + t // 2, (t % 2) * 2048 + 16 * kk))
    XR = 48
    for u in range(4):
        a('s_add_u32 s27, s%d, %d' % (34 + u, WS_X0))
        a('buffer_load_dwordx4 %s, v4, s[8:11], s27 offen' % vr(XR + 4 * u, 4))
    B1 = 64
    TC = 80; TSN = 96
    A2 = 112
    a('v_and_b32 v6, 15, v2\nv_lshrrev_b32 v7, 4, v2')
    a('v_add_u32 v8, s24, v6\nv_sub_u32 v9, 40, v8\nv_cmp_gt_u32 vcc, 8, v6\nv_cndmask_b32 v8, v9, v8, vcc\nv_cmp_eq_u32 vcc, 32, v8\nv_cndmask_b32 v8, v8, 16, vcc')
    a('v_cvt_f32_u32 v8, v8\nv_cvt_f32_u32 v9, v7')
    a('v_mul_f32 v10, %s, v8\nv_mul_f32 v11, %s, v9\nv_mul_f32 v11, v11, v10' % (f2u(1 / 32.), f2u(8.)))
    for kk in range(2):
        for i in range(4):
            a('v_fmamk_f32 v12, v10, %s, v11' % f2u(4 * kk + i))
            a('v_cos_f32 v13, v12\nv_sin_f32 v14, v12')
            a('v_cvt_pk_f16_f32 v%d, v13, v14\nv_cvt_pk_f16_f32 v%d, -v14, v13' % (B1 + 8 * kk + i, B1 + 8 * kk + 4 + i))
    a('v_mul_f32 v10, %s, v8\nv_mul_f32 v11, %s, v9\nv_mul_f32 v12, v11, v10' % (f2u(1 / 2048.), f2u(16.)))
    for t in range(4):
        for j in range(4):
            a('v_fmamk_f32 v13, v10, %s, v12' % f2u(4 * j + t))
            a('v_cos_f32 v%d, v13\nv_sin_f32 v%d, v13' % (TC + 4 * t + j, TSN + 4 * t + j))
    a('v_and_b32 v8, 7, v6\nv_lshlrev_b32 v8, 1, v8\nv_lshrrev_b32 v10, 3, v6\nv_add_u32 v8, v8, v10\nv_cvt_f32_u32 v8, v8\nv_mul_f32 v10, %s, v8\nv_mul_f32 v12, v11, v10' % f2u(1 / 64.))
    for t in range(4):
        for j2 in range(2):
            for u in range(2): a('v_fmamk_f32 v%d, v10, %s, v12' % (13 + u, f2u(4 * (2 * j2 + u) + t)))
            a('v_cos_f32 v8, v13\nv_cos_f32 v9, v14\nv_sin_f32 v13, v13\nv_sin_f32 v14, v14')
            a('v_cvt_pk_f16_f32 v%d, v8, v9\nv_cvt_pk_f16_f32 v%d, v13, v14' % (A2 + 4 * t + j2, A2 + 4 * t + 2 + j2))
    a('s_mul_i32 s26, s3, %d' % YW)
    a('v_mul_u32_u24 v8, %d, v6\nv_lshrrev_b32 v9, 1, v7\nv_lshl_add_u32 v8, v9, 7, v8\nv_and_b32 v9, 1, v7\nv_lshl_add_u32 v8, v9, 4, v8\nv_add_u32 v8, s26, v8' % YN)
    a('s_mul_i32 s26, s3, %d\ns_xor_b32 s27, s3, 2\ns_mul_i32 s27, s27, %d' % (4 * YN, 4 * YN))
    a('v_lshl_add_u32 v9, v2, 2, s26')
    a('v_sub_u32 v12, 63, v2\nv_lshl_add_u32 v10, v12, 2, s27')
    a('s_and_b32 s28, s30, 15\ns_cmp_eq_u32 s28, 0\ns_cselect_b32 s27, s26, s27')
    a('v_sub_u32 v13, 32, v2\nv_and_b32 v13, 31, v13\nv_sub_u32 v14, 95, v2\nv_cmp_gt_u32 vcc, 32, v2\nv_cndmask_b32 v13, v14, v13, vcc')
    a('s_cmp_eq_u32 s30, 0\ns_cselect_b64 vcc, -1, 0')
    a('v_cndmask_b32 v12, v12, v13, vcc\nv_lshl_add_u32 v11, v12, 2, s27')
    stamp(a, 1, st)
    UR = 128; UI = 144
    for t in range(4):
        for part, O in ((0, UR), (1, UI)):
            for kk in range(2):
                a('v_mfma_f32_16x16x32_f16 %s, %s, %s, %s' % (vr(O + 4 * t, 4), vr(ZF + 8 * t + 4 * kk, 4), vr(B1 + 8 * kk + 4 * part, 4), vr(O + 4 * t, 4) if kk else '0'))
    stamp(a, 2, st)
    for t in range(4):
        for j in (0, 2):
            r, i, c, s_ = vr(UR + 4 * t + j, 2), vr(UI + 4 * t + j, 2), vr(TC + 4 * t + j, 2), vr(TSN + 4 * t + j, 2)
            T0, T1 = vr(40 + 2 * j, 2), vr(42 + 2 * j, 2)
            a('v_pk_mul_f32 %s, %s, %s\nv_pk_mul_f32 %s, %s, %s' % (T0, r, c, T1, i, c))
            a('v_pk_fma_f32 %s, %s, %s, %s\nv_pk_fma_f32 %s, %s, %s, %s neg_lo:[1,0,0] neg_hi:[1,0,0]' % (T0, i, s_, T0, T1, r, s_, T1))
        for j in (0, 2):
            R0, I0 = 40 + 2 * j, 42 + 2 * j
            a('v_cvt_pk_f16_f32 v%d, v%d, v%d\nv_cvt_pk_f16_f32 v%d, v%d, v%d' % (16 + 4 * t + j // 2, R0, R0 + 1, 18 + 4 * t + j // 2, I0, I0 + 1))
            if t == 1: a('v_cvt_pk_f16_f32 v%d, v%d, v%d\nv_cvt_pk_f16_f32 v%d, -v%d, -v%d' % (32 + j // 2, I0, I0 + 1, 34 + j // 2, R0, R0 + 1))
            if t == 3: a('v_cvt_pk_f16_f32 v%d, -v%d, -v%d\nv_cvt_pk_f16_f32 v%d, v%d, v%d' % (36 + j // 2, I0, I0 + 1, 38 + j // 2, R0, R0 + 1))
        M = lambda d, A, B, c: a('v_mfma_f32_16x16x32_f16 %s, %s, %s, %s' % (vr(d, 4), vr(A2 + 4 * A, 4), vr(B, 4), vr(d, 4) if c else '0'))
        if t == 0: M(64, 0, 16, 0)
        if t == 1: M(72, 1, 20, 0); M(76, 1, 32, 0)
        if t == 2: M(68, 2, 24, 0)
        if t == 3: M(72, 3, 28, 1); M(76, 3, 36, 1)
    for j in (0, 2):
        a('v_pk_add_f32 %s, %s, %s\nv_pk_add_f32 %s, %s, %s neg_lo:[0,1] neg_hi:[0,1]' % (vr(80 + j, 2), vr(64 + j, 2), vr(68 + j, 2), vr(84 + j, 2), vr(64 + j, 2), vr(68 + j, 2)))
    for b, (x, y, neg) in enumerate([(80, 72, 0), (84, 76, 0), (80, 72, 1), (84, 76, 1)]):
        for j in (0, 2):
            a('v_pk_add_f32 %s, %s, %s%s' % (vr(96 + 4 * b + j, 2), vr(x + j, 2), vr(y + j, 2), ' neg_lo:[0,1] neg_hi:[0,1]' if neg else ''))
        a('ds_write_b128 v8, %s offset:%d' % (vr(96 + 4 * b, 4), 32 * b))
    a.wait_all(vm=False); a('s_barrier')
    stamp(a, 3, st)
    a('s_cmp_ge_u32 s3, 4\ns_cbranch_scc1 %s_fin' % name)
    Y = 64
    W = YW // 256
    for u in range(4):
        if u: a('v_add_u32 v9, %d, v9\nv_add_u32 v10, %d, v10' % (YN, YN))
        mi = 10 if u else 11
        a('ds_read2st64_b32 %s, v9 offset0:0 offset1:%d' % (vr(Y + 8 * u, 2), W))
        a('ds_read2st64_b32 %s, v9 offset0:%d offset1:%d' % (vr(Y + 8 * u + 2, 2), 2 * W, 3 * W))
        a('ds_read2st64_b32 %s, v%d offset0:%d offset1:%d' % (vr(Y + 8 * u + 4, 2), mi, 4 * W, 3 * W))
        a('ds_read2st64_b32 %s, v%d offset0:%d offset1:%d' % (vr(Y + 8 * u + 6, 2), mi, 2 * W, W))
    for u in range(4):
        for j in range(4):
            a('v_lshlrev_b32 v%d, 16, v%d\nv_and_b32 v%d, 0xffff0000, v%d' % (16 + 8 * u + 2 * j, XR + 4 * u + j, 17 + 8 * u + 2 * j, XR + 4 * u + j))
    for u in range(4):
        for j in range(4): a('v_pk_add_f32 %s, %s, %s' % (vr(16 + 8 * u + 2 * j, 2), vr(16 + 8 * u + 2 * j, 2), vr(Y + 8 * u + 2 * j, 2)))
        for j in range(4): a('v_cvt_pk_bf16_f32 v%d, v%d, v%d' % (XR + 4 * u + j, 16 + 8 * u + 2 * j, 17 + 8 * u + 2 * j))
        a('s_add_u32 s27, s%d, %d' % (34 + u, WS_X1))
        a('buffer_store_dwordx4 %s, v4, s[8:11], s27 offen' % vr(XR + 4 * u, 4))
    a('s_cmp_eq_u32 s20, 0\ns_cbranch_scc0 %s_fin' % name)
    a('v_lshrrev_b32 v4, 2, v4')
    for u in range(4):
        a('s_lshl_b32 s27, s%d, 7\ns_add_u32 s27, s27, %d' % (30 + u, WS_MU + (2 + layer) * 8192))
        a('buffer_store_dword v%d, v4, s[8:11], s27 offen' % (Y + 8 * u))
    a.label(name + '_fin')
    a.reset()
    stamp(a, 4, st)
    stamp_out(a, 5, idx, st, 3, 's[8:11]')
    a.label(name + '_end')
    a('s_endpgm')
```

```python
import numpy as np
S, D, F = 2048, 576, 4608
MB = 1 << 20
WS_W1 = 0
WS_W2 = 11 * MB
WS_X1 = 17 * MB
WS_X0 = 20 * MB
WS_Z = 23 * MB
WS_PART = 26 * MB
WS_ACT = 36 * MB
WS_MU = 55 * MB
WS_FLAG = 56 * MB
WS_TAB = 57 * MB
WS_STAMP = 60 * MB
XBYTES = 72 * 2048 * 16

def dmap(g, i):
    return np.where(i < 4, 4 * g + i, 572 - 4 * g + (i - 4))
def p_of_s(s): return 32 * (s % 64) + s // 64
def s_of_p(p): return 64 * (p % 32) + p // 32

def to_units(x):
    g = np.arange(72)[:, None, None]; p = np.arange(2048)[None, :, None]; i = np.arange(8)[None, None, :]
    return x[s_of_p(p), dmap(g, i)]
def from_units(u):
    x = np.zeros((2048, 576), u.dtype)
    g = np.arange(72)[:, None, None]; p = np.arange(2048)[None, :, None]; i = np.arange(8)[None, None, :]
    sp, dd = np.broadcast_arrays(s_of_p(p), dmap(g, i))
    x[sp, dd] = u
    return x

def w1_frag_list():
    L = []
    for j in range(3):
        s = []
        for kg in range(2):
            for mat in range(2):
                for c in range(3):
                    for l in range(3): s.append((c, mat, 6 * j + 3 * kg + l))
        L.append(s)
    for c in range(3, 8):
        L.append([(c, mat, kk) for mat in range(2) for kk in range(18)])
    L.append([(8, mat, 3 * kg + l) for kg in range(6) for mat in range(2) for l in range(3)])
    return L

def pack_w1(wg, wu):
    out = np.zeros((32, 9, 36, 64, 8), wg.dtype)
    l = np.arange(64)[:, None]; i = np.arange(8)[None, :]
    m = l % 16; q = l // 16
    fc = np.arange(32)[:, None, None]
    for s, fr in enumerate(w1_frag_list()):
        for n, (c, mat, kk) in enumerate(fr):
            W = wu if mat else wg
            out[:, s, n] = W[dmap(4 * kk + q, i)[None], (144 * fc + 16 * c + m[None])]
    return out

def dcol(cq, tile, m):
    q = m // 4; j = m % 4
    if tile < 8:
        g = 18 * cq + 4 * (tile // 2) + q
        return dmap(g, j + 4 * (tile % 2))
    g = 18 * cq + 16 + q % 2
    return dmap(g, j + 4 * (q // 2))

def pack_w2(wd):
    out = np.zeros((4, 4, 9, 9, 4, 64, 8), wd.dtype)
    l = np.arange(64)[:, None]; i = np.arange(8)[None, :]
    m = l % 16; q = l // 16
    for q4 in range(4):
        for cq in range(4):
            for c in range(9):
                for t in range(9):
                    for pr in range(4):
                        fcp = 8 * q4 + 2 * pr + q // 2
                        f = 144 * fcp + 16 * c + 8 * (q % 2) + i
                        out[q4, cq, c, t, pr] = wd[f, dcol(cq, t, m)]
    return out

def act_from_ws(u):
    return u.transpose(0, 2, 1, 3).reshape(2048, 4608)
```

```python
import sys
from ab import *
from layout import *
import ffn, fnet
def build(st):
    a = Asm(); L = []; descs = []
    def add(nm, grid, blk, lds, vg, accum=None):
        L.append((nm, grid, blk, lds))
        d = kernel_desc(nm, vg, accum=accum)
        if d not in descs: descs.append(d)
    fnet.repack_kernel(a, 'rp_kernel', st, len(L)); add('rp_kernel', 432, 256, ffn.SLOT, 64)
    for l in range(2):
        fnet.k1_kernel(a, 'k1l%d_kernel' % l, l, st, len(L)); add('k1l%d_kernel' % l, 256, 576, fnet.K1_LDS + 9216, 112)
        fnet.k2_kernel(a, 'k2l%d_kernel' % l, l, st, len(L)); add('k2l%d_kernel' % l, 144, 320, fnet.K2_LDS, 160)
        if st or l == 0:
            sfx = str(l) if st else ''
            ffn.gemm1_kernel(a, 'g1%s_kernel' % sfx, st, len(L))
            ffn.gemm2_kernel(a, 'g2%s_kernel' % sfx, st, len(L) + 1)
        add('g1%s_kernel' % sfx, 256, 256, 4 * ffn.SLOT, 512, 256)
        add('g2%s_kernel' % sfx, 256, 256, 4 * ffn.SLOT, 512, 256)
    fnet.k4_kernel(a, 'k4_kernel', st, len(L)); add('k4_kernel', 256, 576, 0, 48)
    print('instrs', a.n_ins, 'nops', a.nops)
    return file_text(L, a.text(), descs)
if __name__ == '__main__':
    for kv in sys.argv[3:]:
        k_, v_ = kv.split('='); setattr(ffn, k_, int(v_))
    open(sys.argv[1], 'w').write(build(int(sys.argv[2])))
```

```python
import re

REG = re.compile(r'(?<![\w.])([vas])(?:(\d+)|\[(\d+):(\d+)\])(?![\w])')
TRANS = ('v_exp_f32','v_log_f32','v_rcp_f32','v_rsq_f32','v_sqrt_f32','v_sin_f32','v_cos_f32','v_rcp_iflag_f32',
         'v_exp_f16','v_log_f16','v_rcp_f16','v_rsq_f16','v_sqrt_f16','v_sin_f16','v_cos_f16')

def regs_of(op):
    out = []
    for m in REG.finditer(op):
        f = m.group(1)
        if m.group(2) is not None:
            out.append((f, int(m.group(2))))
        else:
            out += [(f, i) for i in range(int(m.group(3)), int(m.group(4)) + 1)]
    t = op.strip()
    if re.search(r'\bvcc\b', t): out += [('s', 'vcc')]
    if re.search(r'\bvcc_(lo|hi)\b', t): out += [('s', 'vcc')]
    if re.search(r'\bexec(_lo|_hi)?\b', t): out += [('s', 'exec')]
    if re.search(r'\bm0\b', t): out += [('s', 'm0')]
    return out

def split_ops(s):
    ops, depth, cur = [], 0, ''
    for ch in s:
        if ch in '[(': depth += 1
        if ch in '])': depth -= 1
        if ch == ',' and depth == 0:
            ops.append(cur.strip()); cur = ''
        else:
            cur += ch
    if cur.strip(): ops.append(cur.strip())
    return ops

class Ins:
    __slots__ = ('text','mn','ops','defs','uses','kind','passes','A','B','C','D','tag','wide','data','dpp','opsel')
    def __init__(self, text, tag=None):
        self.text = text; self.tag = tag
        t = text.split(';')[0].strip()
        p = t.split(None, 1)
        mn = p[0]; self.mn = mn
        rest = p[1] if len(p) > 1 else ''
        ops = split_ops(rest); self.ops = ops
        R = [regs_of(o) for o in ops]
        flat = lambda L: [r for x in L for r in x]
        self.passes = 0; self.A = self.B = self.C = self.D = (); self.wide = False; self.data = ()
        self.dpp = ('_dpp' in mn) or bool(re.search(r'\b(row_shr|row_shl|row_ror|quad_perm|row_bcast|row_mirror|row_half_mirror|wave_sh|wave_ro|row_newbcast|row_xmask|row_share)', rest))
        self.opsel = ('_sdwa' in mn and 'dst_sel:DWORD' not in rest) or 'mixhi' in mn or (('op_sel:' in rest) and not mn.startswith('v_pk_') and not mn.startswith('v_dot') and not mn.startswith('v_fma_mix_f32') and not mn.startswith('v_fma_mixlo'))
        base = re.sub(r'_(e32|e64|dpp|sdwa)$', '', mn)
        if mn.startswith('v_mfma'):
            self.kind = 'mfma'
            self.D, self.A, self.B, self.C = R[0], R[1], R[2], R[3]
            self.defs = R[0]; self.uses = R[1] + R[2] + R[3]
            if '32x32x16' in mn or '32x32x8' in mn: self.passes = 8
            elif '16x16x32' in mn or '16x16x16' in mn: self.passes = 4
            elif '4x4x4' in mn: self.passes = 2
            else: raise ValueError('unknown mfma ' + mn)
        elif mn.startswith('v_'):
            self.kind = 'valu'
            if base in TRANS: self.kind = 'trans'
            if base.startswith('v_dot'): self.kind = 'dot'
            if base == 'v_nop':
                self.defs = []; self.uses = []
            elif base.startswith('v_cmpx'):
                self.defs = R[0] + [('s','exec')]; self.uses = flat(R[1:])
            elif base.startswith(('v_add_co', 'v_sub_co', 'v_subrev_co', 'v_addc_co', 'v_subb_co', 'v_div_scale', 'v_mad_u64')):
                self.defs = R[0] + R[1]; self.uses = flat(R[2:])
            elif base.startswith(('v_permlane32_swap', 'v_permlane16_swap', 'v_swap')):
                self.defs = R[0] + R[1]; self.uses = R[0] + R[1]
            elif base.startswith(('v_fmac', 'v_dot2c', 'v_pk_fmac', 'v_writelane', 'v_fma_mixhi', 'v_fma_mixlo')) or self.dpp or self.opsel:
                self.defs = R[0]; self.uses = flat(R)
            else:
                self.defs = R[0]; self.uses = flat(R[1:])
        elif mn.startswith('ds_'):
            self.kind = 'ds'
            if mn.startswith(('ds_read', 'ds_bpermute', 'ds_permute', 'ds_swizzle')) or '_rtn' in mn:
                self.defs = R[0]; self.uses = flat(R[1:])
                if 'd16' in mn: self.uses = flat(R)
            else:
                self.defs = []; self.uses = flat(R)
        elif mn.startswith(('buffer_', 'global_')):
            self.kind = 'vmem'
            lds = bool(re.search(r'\blds\b', rest)) or '_lds_' in mn
            if mn.startswith(('buffer_wbl2', 'buffer_inv')):
                self.defs = []; self.uses = []
            elif lds:
                self.defs = []; self.uses = flat(R) + [('s','m0')]; self.kind = 'dma'
            elif '_load' in mn:
                self.defs = R[0]; self.uses = flat(R[1:])
                if 'd16' in mn: self.uses = flat(R)
            elif '_atomic' in mn:
                ret = bool(re.search(r'\bsc0\b', rest))
                self.defs = R[0] if ret else []; self.uses = flat(R)
            else:
                self.defs = []; self.uses = flat(R)
                self.data = R[0] if mn.startswith('buffer_') else R[1]
                self.wide = mn.endswith(('x3', 'x4'))
        elif mn.startswith(('s_load', 's_buffer_load', 's_memtime', 's_memrealtime', 's_atomic')):
            self.kind = 'smem'; self.defs = R[0]; self.uses = flat(R[1:])
        elif mn.startswith('s_'):
            self.kind = 'salu'
            if mn.startswith(('s_cmp', 's_waitcnt', 's_branch', 's_cbranch', 's_barrier', 's_nop', 's_setprio', 's_sleep', 's_endpgm', 's_bitcmp', 's_setreg', 's_setpc')):
                self.defs = []; self.uses = flat(R)
            elif 'saveexec' in mn:
                self.defs = R[0] + [('s','exec')]; self.uses = flat(R[1:]) + [('s','exec')]
            elif mn.startswith(('s_addk', 's_mulk', 's_cmov', 's_bitset')):
                self.defs = R[0]; self.uses = flat(R)
            else:
                self.defs = R[0]; self.uses = flat(R[1:])
        else:
            raise ValueError('unknown instr: ' + text)
        self.defs = set(self.defs); self.uses = set(self.uses)
    def states(self):
        if self.mn == 's_nop': return int(self.ops[0], 0) + 1
        return 1

VALUISH = ('valu', 'trans', 'dot')

def need(p, c):
    n = 0
    vd = {r for r in p.defs if r[0] != 's'}
    sd = {r for r in p.defs if r[0] == 's'}
    if p.kind == 'mfma':
        P = p.passes
        big = {2: 5, 4: 8, 8: 12, 16: 20}[P]
        if c.kind == 'mfma':
            if vd & (set(c.A) | set(c.B)): n = max(n, big)
            if vd & set(c.C):
                if list(c.C) == list(p.D) and c.passes == P: n = max(n, 2 if P == 2 else 0)
                else: n = max(n, P + 2)
            elif vd & set(c.D):
                n = max(n, P + 2)
        elif c.kind in VALUISH + ('vmem', 'ds', 'dma'):
            if vd & (c.uses | c.defs): n = max(n, big)
        if c.kind in VALUISH and set(p.C) & c.defs: n = max(n, P - 1)
    if p.kind in VALUISH:
        if c.kind == 'mfma' and vd & c.uses: n = max(n, 2)
        if c.kind in VALUISH:
            if c.dpp and vd & c.uses: n = max(n, 2)
            if c.mn.startswith('v_permlane') and vd & c.uses: n = max(n, 2)
            if c.mn.startswith(('v_readlane', 'v_readfirstlane')) and vd & c.uses: n = max(n, 1)
            if p.kind == 'trans' and c.kind != 'trans' and vd & c.uses: n = max(n, 1)
            if p.opsel and vd & (c.uses | c.defs): n = max(n, 1)
            if sd & c.uses:
                n = max(n, 4 if c.mn.startswith(('v_readlane', 'v_writelane', 'v_div_fmas')) else 2)
            if ('s','exec') in sd:
                if c.dpp: n = max(n, 5)
                if c.mn.startswith(('v_readlane', 'v_readfirstlane', 'v_writelane', 'v_permlane')): n = max(n, 4)
        if c.kind == 'mfma' and ('s','exec') in sd: n = max(n, 4)
        if c.kind in ('vmem', 'dma') and sd & c.uses: n = max(n, 5)
        if c.kind in ('salu', 'smem') and sd & c.uses: n = max(n, 1)
        if p.kind == 'dot' and vd & (c.uses | c.defs):
            same = re.sub(r'_(e32|e64)$', '', p.mn) == re.sub(r'_(e32|e64)$', '', c.mn)
            srcab = set(regs_of(c.ops[1]) + regs_of(c.ops[2])) if c.kind == 'dot' else set()
            if not (same and not (vd & srcab)): n = max(n, 3)
    if p.kind == 'salu' and ('s','m0') in sd and (c.kind == 'dma' or 'addtid' in c.mn): n = max(n, 1)
    if p.kind == 'vmem' and p.wide and set(p.data) & c.defs:
        n = max(n, 2 if c.kind in VALUISH + ('mfma',) else 1)
    return n

class Asm:
    def __init__(self):
        self.out = []
        self.hist = []
        self.vm = []
        self.lg = []
        self.nops = 0
        self.n_ins = 0
        self.auto = True
    def raw(self, s): self.out.append(s)
    def label(self, name, keep=False):
        self.out.append(name + ':')
    def _emit(self, ins):
        self.out.append('    ' + ins.text); self.hist.append(ins); self.n_ins += 1
        if len(self.hist) > 40: self.hist.pop(0)
    def _wait(self, vm=None, lg=None):
        parts = []
        if vm is not None and vm < len(self.vm):
            assert vm <= 63; parts.append('vmcnt(%d)' % vm); self.vm = self.vm[len(self.vm) - vm:] if vm else []
        if lg is not None and lg < len(self.lg):
            if any(x[2] for x in self.lg): lg = 0
            if lg > 15: lg = 15
            parts.append('lgkmcnt(%d)' % lg); self.lg = self.lg[len(self.lg) - lg:] if lg else []
        if parts: self._emit(Ins('s_waitcnt ' + ' '.join(parts)))
    def wait_tag(self, tag):
        vm = lg = None
        for i, x in enumerate(self.vm):
            if x[1] == tag: vm = len(self.vm) - 1 - i
        for i, x in enumerate(self.lg):
            if x[1] == tag: lg = len(self.lg) - 1 - i
        if vm is not None and vm > 63: vm = 63
        self._wait(vm, lg)
    def wait_tags(self, tags):
        vm = None
        for i, x in enumerate(self.vm):
            if x[1] in tags: vm = len(self.vm) - 1 - i
        self._wait(vm, None)
    def wait_all(self, vm=True, lg=True, force=False):
        if force:
            self._emit(Ins('s_waitcnt ' + ' '.join((['vmcnt(0)'] if vm else []) + (['lgkmcnt(0)'] if lg else []))))
            if vm: self.vm = []
            if lg: self.lg = []
        else:
            self._wait(0 if vm else None, 0 if lg else None)
    def __call__(self, text, tag=None):
        for line in text.split('\n'):
            line = line.strip()
            if not line or line.startswith(';'): continue
            self.ins(line, tag)
    def ins(self, text, tag=None):
        ins = Ins(text, tag)
        if ins.mn == 's_waitcnt':
            m = re.search(r'vmcnt\((\d+)\)', text)
            if m:
                n = int(m.group(1)); self.vm = self.vm[max(0, len(self.vm) - n):] if n else []
            m = re.search(r'lgkmcnt\((\d+)\)', text)
            if m:
                n = int(m.group(1)); self.lg = self.lg[max(0, len(self.lg) - n):] if n else []
            self._emit(ins); return
        touched = ins.defs | ins.uses
        vm = lg = None
        for i, x in enumerate(self.vm):
            if x[0] & touched: vm = len(self.vm) - 1 - i
        for i, x in enumerate(self.lg):
            if x[0] & touched: lg = len(self.lg) - 1 - i
        if vm is not None and vm > 63: vm = 63
        self._wait(vm, lg)
        if ins.kind in ('vmem', 'dma') and len(self.vm) >= 63: self._wait(62, None)
        dist = 0; pad = 0
        for p in reversed(self.hist):
            n = need(p, ins)
            if n - dist > pad: pad = n - dist
            dist += p.states()
            if dist >= 20: break
        while pad > 0:
            k = min(pad, 16); self._emit(Ins('s_nop %d' % (k - 1))); pad -= k; self.nops += k
        self._emit(ins)
        if ins.kind in ('vmem', 'dma'): self.vm.append((set(ins.defs), tag))
        elif ins.kind == 'ds': self.lg.append((set(ins.defs), tag, False))
        elif ins.kind == 'smem': self.lg.append((set(ins.defs), tag, True))
    def fence(self):
        dist = 0; pad = 0
        for p in reversed(self.hist):
            n = 0
            if p.kind == 'mfma': n = {2: 5, 4: 8, 8: 12, 16: 20}[p.passes]
            elif p.kind in VALUISH: n = 5 if any(r[0] == 's' for r in p.defs) else (3 if p.kind == 'dot' else 2)
            elif p.kind == 'vmem' and p.wide: n = 2
            elif p.kind == 'salu': n = 1 if ('s','m0') in p.defs else 0
            if n - dist > pad: pad = n - dist
            dist += p.states()
            if dist >= 20: break
        while pad > 0:
            k = min(pad, 16); self._emit(Ins('s_nop %d' % (k - 1))); pad -= k; self.nops += k
    def state(self): return (list(self.hist), list(self.vm), list(self.lg))
    def restore(self, st): self.hist, self.vm, self.lg = list(st[0]), list(st[1]), list(st[2])
    def reset(self): self.hist, self.vm, self.lg = [], [], []
    def text(self): return '\n'.join(self.out) + '\n'

def kernel_begin(a, name):
    a.raw('.globl %s' % name); a.raw('.p2align 8'); a.raw('.type %s,@function' % name); a.raw('%s:' % name); a.reset()

def kernel_desc(name, vgpr, sgpr=102, accum=None):
    if accum is None: accum = (min(vgpr, 256) + 3) // 4 * 4
    return ('.p2align 6\n.amdhsa_kernel %s\n  .amdhsa_next_free_vgpr %d\n  .amdhsa_next_free_sgpr %d\n  .amdhsa_accum_offset %d\n'
            '  .amdhsa_group_segment_fixed_size 0\n  .amdhsa_kernarg_size 96\n  .amdhsa_user_sgpr_count 2\n'
            '  .amdhsa_user_sgpr_kernarg_segment_ptr 1\n  .amdhsa_system_sgpr_workgroup_id_x 1\n'
            '  .amdhsa_float_denorm_mode_32 3\n  .amdhsa_float_denorm_mode_16_64 3\n.end_amdhsa_kernel\n') % (name, vgpr, sgpr, accum)

def file_text(launches, body, descs, header=''):
    s = header
    for (k, g, b, lds) in launches:
        s += '; @launch kernel=%s grid=(%d,1,1) block=(%d,1,1) lds=%d\n' % (k, g, b, lds)
    s += '.amdgcn_target "amdgcn-amd-amdhsa--gfx950"\n.text\n' + body + '.section .rodata,"a"\n' + ''.join(descs)
    return s

def vr(b, n=1): return 'v%d' % b if n == 1 else 'v[%d:%d]' % (b, b + n - 1)
def ar(b, n=1): return 'a%d' % b if n == 1 else 'a[%d:%d]' % (b, b + n - 1)
def sr(b, n=1): return 's%d' % b if n == 1 else 's[%d:%d]' % (b, b + n - 1)

_pf = [0]
def prefetch_code(a, start, end, forward, nthreads, maxbytes, sp, vt, vd):
    _pf[0] += 1
    lab = 'L_pf%d' % _pf[0]
    a('s_getpc_b64 %s' % sr(sp, 2))
    a.label(lab)
    a('s_add_u32 s%d, s%d, %s-%s' % (sp, sp, start, lab))
    a('s_addc_u32 s%d, s%d, %d' % (sp + 1, sp + 1, 0 if forward else -1))
    n = -(-maxbytes // (128 * nthreads))
    for k in range(n):
        a('v_lshlrev_b32 v%d, 7, v0' % vt)
        if k: a('v_add_u32 v%d, %d, v%d' % (vt, k * 128 * nthreads, vt))
        a('v_min_u32 v%d, %s-%s-4, v%d' % (vt, end, start, vt))
        a('global_load_dword v%d, v%d, %s' % (vd + k, vt, sr(sp, 2)))
```

```python
from ab import *
from layout import *
from collections import deque

SLOT = 36864
NOAL = 0; NOSILU = 0; NODMA = 0; NODS = 0; NOBAR = 0; E64 = 0; NOST = 0
NPRE = 30; GAP1 = 50; GAP2 = 90; NPRE2 = 34; GAP3 = 45; STGAP = 50; STSLACK = 0; WIN = 28; TLAT = 0
LOG2E = 1.4426950408889634

def f2u(x):
    import struct
    return '0x%08x' % struct.unpack('<I', struct.pack('<f', x))[0]

class Item:
    def __init__(self, text, cost=1, tag=None, pre=None, after=0):
        self.text = text; self.cost = cost; self.tag = tag; self.pre = list(pre or []); self.after = after
        self.ins = Ins(text); self.isv = text.startswith('buffer_')

class Sched:
    def __init__(self, a):
        self.a = a; self.hi = []; self.lo = []; self.mem = []; self.n = 0; self.gap = 50; self.nextmem = -99
        self.dl = None; self.ev = []; self.watch = []; self.seen = {}; self.lastw = {}
    def push(self, q, text, cost=1, tag=None, pre=None, after=0, front=False):
        it = Item(text, cost, tag, pre, after)
        if front: q.insert(0, it)
        else: q.append(it)
    def emit_item(self, it):
        t = it.text
        skip = self.n > 504 and ((NOSILU and t.startswith('v_')) or (NODMA and t.endswith('lds')) or (NODS and t.startswith('ds_read')) or (NOST and t.startswith('buffer_store_dwordx4')) or (NOAL and it.tag and it.tag.startswith('al')))
        if not skip:
            for p in it.pre: self.a(p)
            self.a(t, it.tag)
        for r in it.ins.defs: self.lastw[r] = (self.n, it.ins.kind)
        if it.isv: self.nextmem = max(self.nextmem, self.n - 0.99) + (min(self.gap, STGAP) if 'x4' in t and '_store' in t else (self.gap if 'x4' in t else 10)) / 10.
        if it.tag:
            self.seen[it.tag] = self.seen.get(it.tag, 0) + 1
            for w in list(self.watch):
                if w[0] == it.tag and self.seen[it.tag] >= w[1]:
                    self.watch.remove(w); self.at(self.n + w[2], w[3])
    def at(self, n, f): self.ev.append((n, f))
    def on_issued(self, tag, count, delay, f):
        if self.seen.get(tag, 0) >= count: self.at(self.n + delay, f)
        else: self.watch.append((tag, count, delay, f))
    def heads(self):
        seen = set(); out = []
        for it in self.mem + [x for x in self.lo if x.isv][:1]:
            cls = it.ins.ops[-1].split()[0]
            if cls not in seen: seen.add(cls); out.append(it)
        return out
    def pick_lo(self, budget):
        blockd = set(); blocku = set(); best = None
        for k, it in enumerate(self.lo[:WIN]):
            i = it.ins
            ok = it.after <= self.n and not (i.uses & blockd) and not (i.defs & (blockd | blocku)) and it.cost <= budget
            if ok and it.isv: ok = (not it.pre) and self.n >= self.nextmem - STSLACK / 10.
            if ok:
                for r in i.uses:
                    w = self.lastw.get(r)
                    if w and (w[0] == self.n or (w[0] == self.n - 1 and (i.mn.startswith('v_permlane') or (w[1] == 'trans' and TLAT)))): ok = False
            if ok:
                if best is None: best = k
                if it.cost == budget or it.isv: best = k; break
                if budget == 2 and k > 8: break
            blockd |= i.defs; blocku |= i.uses
        return best
    def mfma(self, text, scalar=None, budget=2):
        a = self.a
        mi = Ins(text)
        for q in (self.hi, self.lo, self.mem):
            for it in q:
                qi = it.ins
                assert not (qi.defs & (set(mi.A) | set(mi.B))), 'MFMA %s reads a register whose producer is still queued: %s' % (text, it.text)
                assert not ((qi.defs | qi.uses) & mi.defs), 'MFMA %s writes a register a queued item touches: %s' % (text, it.text)
        a(text); self.n += 1
        before = a.n_ins
        if scalar: scalar()
        if a.n_ins == before:
            for e in list(self.ev):
                if e[0] <= self.n:
                    self.ev.remove(e); e[1](); break
        if self.dl: self.mem.sort(key=lambda it: self.dl(it.tag))
        used = a.n_ins - before
        if used:
            budget -= used - 1
            if a.hist[-1].kind == 'valu' and used == 1: budget -= 1
        else:
            for it in self.heads():
                if it.pre:
                    a(it.pre.pop(0)); break
        if budget > 0 and self.mem and self.n >= self.nextmem and self.mem[0].after <= self.n and len(self.mem[0].pre) < budget:
            st_waiting = False
            k = self.pick_lo(1)
            if k is not None and self.lo[k].isv: st_waiting = True
            if not st_waiting:
                it = self.mem.pop(0); budget -= 1 + len(it.pre); self.emit_item(it)
        if budget > 0 and self.hi:
            self.emit_item(self.hi.pop(0)); budget -= 1
        while budget > 0:
            k = self.pick_lo(budget)
            if k is not None:
                it = self.lo.pop(k); budget -= it.cost; self.emit_item(it)
            elif self.hi:
                self.emit_item(self.hi.pop(0)); budget -= 1
            else: break
    def drain(self, q):
        while q: self.emit_item(q.pop(0))

def prewait(a, regs):
    touched = set(regs_of(regs))
    vm = lg = None
    for i, x in enumerate(a.vm):
        if x[0] & touched: vm = len(a.vm) - 1 - i
    for i, x in enumerate(a.lg):
        if x[0] & touched: lg = len(a.lg) - 1 - i
    a._wait(vm, lg)

V_HX = 0
vLANE16 = 1
vL = [2, 3, 4, 5]
vH = 6; vAS = 7; vAL = 8; vPO = 9; vP8 = 10
vC1 = 12; vS2 = 16
vT = 20
vPK = 36
vFR = 44
vGR = 76
vACC = 92
vHX = 220
NV = 256
sWV = 3; sM0 = 12; sW1 = 13; sW2 = 14; sTA = 15; sTB = 16; sTC = 17; sTD = 18; sTE = 19
sST = 44

def hreg(i):
    return ar(4 * i, 4) if i < 64 else vr(vHX + 4 * (i - 64), 4)

def fstamp(a, k, on):
    if on == 2: a('s_memtime %s' % sr(sST + 2 * k, 2))

def stamp(a, k, on):
    if on == 2:
        if k == 0: fstamp(a, 0, on)
        return
    if on:
        a('s_memtime %s' % sr(sST + 2 * k, 2))
        a('s_memrealtime %s' % sr(sST + 24 + 2 * k, 2))

def stamp_out(a, nst, idx, on):
    if not on: return
    if on == 2: nst = 22
    a('s_memrealtime %s' % sr(sST + 2 * nst, 2))
    a.wait_all(force=True)
    a('s_lshl_b32 s20, s2, 10\ns_lshl_b32 s21, s%d, 8\ns_add_u32 s20, s20, s21\ns_add_u32 s20, s20, %d' % (sWV, WS_STAMP + idx * 262144))
    a('v_mov_b32 v20, 0')
    a('s_mov_b64 exec, 1')
    for k in list(range(-1, nst + 1)) + (list(range(12, 12 + nst)) if on == 1 else []):
        a('v_mov_b32 v22, s%d\nv_mov_b32 v23, s%d' % (sST + 2 * k, sST + 2 * k + 1))
        a('buffer_store_dwordx2 v[22:23], v20, s[8:11], s20 offen offset:%d' % (8 * (k + 1)))
        a('s_nop 1')

def common_prologue(a, name, st):
    kernel_begin(a, name)
    if st: a('s_memrealtime %s' % sr(sST - 2, 2))
    stamp(a, 0, st)
    a('s_load_dwordx2 s[4:5], s[0:1], 88')
    a('s_cmp_ge_u32 s2, 256')
    a('s_cbranch_scc1 %s_end' % name)
    a('v_lshrrev_b32 v20, 6, v0')
    a('v_and_b32 v21, 63, v0')
    a('v_readfirstlane_b32 s%d, v20' % sWV)
    a('v_lshlrev_b32 v%d, 4, v21' % vLANE16)
    a('s_and_b32 s20, s2, 1\ns_lshl_b32 s20, s20, 2\ns_lshr_b32 s21, s2, 6\ns_add_u32 s20, s20, s21')
    a('s_bfe_u32 s21, s2, 0x20001')
    a('s_bfe_u32 s22, s2, 0x30003')
    a('s_mul_i32 s%d, s%d, 9216' % (sM0, sWV))
    for k in range(4):
        a('v_add_u32 v%d, %d, v%d' % (vL[k], k * SLOT, vLANE16))
    a('v_and_b32 v22, 15, v21\nv_lshrrev_b32 v23, 4, v21')
    a('s_waitcnt lgkmcnt(0)')
    a('s_mov_b32 s8, s4\ns_mov_b32 s9, s5\ns_mov_b32 s10, 0x10000000\ns_mov_b32 s11, 0x20000')

def g1_setup(a):
    a('s_lshl_b32 s23, s21, 3\ns_add_u32 s23, s23, s22')
    a('s_mul_i32 s%d, s23, %d\ns_add_u32 s%d, s%d, s%d' % (sW1, 9 * SLOT, sW1, sW1, sM0))
    if WS_W1: a('s_add_u32 s%d, s%d, %d' % (sW1, sW1, WS_W1))
    a('s_lshl_b32 s24, s20, 2\ns_add_u32 s24, s24, s%d' % sWV)
    a('s_lshl_b32 s25, s24, 10\ns_add_u32 s25, s25, %d' % WS_X1)
    a('v_lshlrev_b32 v24, 15, v23\nv_lshl_add_u32 v24, v22, 4, v24\nv_add_u32 v%d, s25, v24' % vH)
    a('s_mul_i32 s25, s24, %d\ns_mul_i32 s26, s23, %d\ns_add_u32 s25, s25, s26\ns_add_u32 s25, s25, %d' % (2 * 576 * 512, 18 * 512, WS_ACT))
    a('v_add_u32 v%d, s25, v%d' % (vAS, vLANE16))

def g2_setup(a):
    a('s_and_b32 s24, s22, 3\ns_lshr_b32 s25, s22, 2')
    a('s_lshl_b32 s26, s21, 2\ns_add_u32 s26, s26, s24\ns_mul_i32 s%d, s26, %d\ns_add_u32 s%d, s%d, s%d\ns_add_u32 s%d, s%d, %d' % (sW2, 9 * SLOT, sW2, sW2, sM0, sW2, sW2, WS_W2))
    a('s_lshl_b32 s26, s20, 1\ns_add_u32 s26, s26, s25\ns_lshl_b32 s26, s26, 2\ns_add_u32 s26, s26, s%d' % sWV)
    a('s_mul_i32 s27, s26, %d\ns_mul_i32 s28, s21, %d\ns_add_u32 s27, s27, s28\ns_add_u32 s27, s27, %d' % (576 * 512, 8 * 18 * 512, WS_ACT))
    a('v_lshrrev_b32 v24, 1, v23\nv_mul_u32_u24 v24, %d, v24\nv_and_b32 v25, 1, v23\nv_lshl_add_u32 v24, v25, 9, v24\nv_lshl_add_u32 v24, v22, 4, v24' % (18 * 512))
    a('v_add_u32 v%d, s27, v24' % vAL)
    a('s_mul_i32 s27, s21, %d\ns_mul_i32 s28, s24, %d\ns_add_u32 s27, s27, s28\ns_lshl_b32 s28, s26, 9\ns_add_u32 s27, s27, s28\ns_add_u32 s27, s27, %d' % (XBYTES, 18 * 32768, WS_PART))
    a('v_lshlrev_b32 v24, 15, v23\nv_lshl_add_u32 v24, v22, 4, v24\nv_add_u32 v%d, s27, v24' % vPO)
    a('s_add_u32 s27, s27, %d' % (16 * 32768))
    a('v_lshlrev_b32 v24, 15, v25\nv_lshl_add_u32 v24, v22, 4, v24\nv_lshrrev_b32 v25, 1, v23\nv_lshl_add_u32 v24, v25, 8, v24\nv_add_u32 v%d, s27, v24' % vP8)

def dma_items(slot, first, sbase, pol=''):
    pos = slot % 4; rel = slot - first
    out = []
    for i in range(9):
        pre = []
        if i % 4 == 0:
            pre = ['s_add_u32 m0, s%d, %d' % (sM0, pos * SLOT + i * 1024), 's_add_u32 s%d, s%d, %d' % (sTA, sbase, rel * SLOT + i * 1024)]
        out.append(('buffer_load_dwordx4 v%d, s[8:11], s%d offen offset:%d %slds' % (vLANE16, sTA, (i % 4) * 1024, pol), pre, 'dma%d' % slot))
    return out

def hload_items(kk):
    out = []
    for sub in range(4):
        pre = ['s_mov_b32 s%d, %d' % (sTB, kk * 131072)] if sub == 0 else []
        out.append(('buffer_load_dwordx4 %s, v%d, s[8:11], s%d offen offset:%d' % (hreg(4 * kk + sub), vH, sTB, sub * 256), pre, 'h%d' % kk))
    return out

def aload_items(c, reg0, pol=''):
    out = []
    for pr in range(4):
        for sub in range(2):
            pre = ['s_mov_b32 s%d, %d' % (sTB, pr * 36 * 512 + c * 1024)] if sub == 0 else []
            out.append(('buffer_load_dwordx4 %s, v%d, s[8:11], s%d offen offset:%d %s' % (hreg(reg0 + 2 * pr + sub), vAL, sTB, sub * 256, pol), pre, 'al%d' % c))
    return out

def accreg(c, mat, sub): return vACC + 32 * (c % 4) + 16 * mat + 4 * sub

def sig_items(c):
    out = []
    for sub in range(4):
        G = accreg(c, 0, sub); T = vT + 4 * sub
        out += [('v_mul_f32 v%d, v%d, v%d' % (T + j, vC1 + sub, G + j), 1) for j in range(4)]
        out += [('v_exp_f32 v%d, v%d' % (T + j, T + j), 2) for j in range(4)]
        out += [('v_fma_f32 v%d, v%d, v%d, v%d' % (T + j, T + j, vS2 + sub, vS2 + sub), 1) for j in range(4)]
        out += [('v_rcp_f32 v%d, v%d' % (T + j, T + j), 2) for j in range(4)]
        out += [('v_mul_f32 v%d, v%d, v%d' % (G + j, T + j, G + j), 1) for j in range(4)]
    return out

def fin_items(c, pol=''):
    out = []
    for pair in range(2):
        P = vPK + 4 * pair
        for s in range(2):
            sub = 2 * pair + s
            G = accreg(c, 0, sub); U = accreg(c, 1, sub)
            out += [('v_mul_f32 v%d, v%d, v%d' % (G + j, G + j, U + j), 1, None, None) for j in range(4)]
        for s in range(2):
            G = accreg(c, 0, 2 * pair + s)
            out += [('v_cvt_pk_bf16_f32 v%d, v%d, v%d' % (P + 2 * s + j, G + 2 * j, G + 2 * j + 1), 1, None, None) for j in range(2)]
    for pair in range(2):
        P = vPK + 4 * pair
        out += [('v_permlane16_swap_b32 v%d, v%d' % (P + j, P + 2 + j), 1, None, None) for j in range(2)]
    for pair in range(2):
        P = vPK + 4 * pair
        out.append(('buffer_store_dwordx4 %s, v%d, s[8:11], s%d offen %s' % (vr(P, 4), vAS, sTC, pol), 1, 'as%d' % c, ['s_mov_b32 s%d, %d' % (sTC, c * 1024 + pair * 576 * 512)]))
    return out

def stat_items():
    out = []
    for sub in range(4):
        out.append(('v_cndmask_b32 v%d, 0, v%d, s[30:31]' % (vS2 + sub, vGR + 4 * sub), 1))
    for j in range(1, 4):
        for sub in range(4):
            out.append(('v_cndmask_b32 v%d, v%d, v%d, s[%d:%d]' % (vS2 + sub, vS2 + sub, vGR + 4 * sub + j, 30 + 2 * j, 31 + 2 * j), 1))
    for sw in ('v_permlane16_swap_b32', 'v_permlane32_swap_b32'):
        for sub in range(4): out.append(('v_mov_b32 v%d, v%d' % (vC1 + sub, vS2 + sub), 1))
        for sub in range(4): out.append(('%s v%d, v%d' % (sw, vC1 + sub, vS2 + sub), 1))
        for sub in range(4): out.append(('v_add_f32 v%d, v%d, v%d' % (vS2 + sub, vS2 + sub, vC1 + sub), 1))
    for sub in range(4): out.append(('v_fma_f32 v%d, v%d, s38, v11' % (vS2 + sub, vS2 + sub), 1))
    for sub in range(4): out.append(('v_rsq_f32 v%d, v%d' % (vC1 + sub, vS2 + sub), 2))
    for sub in range(4): out.append(('v_mul_f32 v%d, %s, v%d' % (vC1 + sub, f2u(-LOG2E), vC1 + sub), 1))
    return out

def stat_setup(a):
    a('v_lshlrev_b32 v24, 2, v23\nv_sub_u32 v24, v22, v24')
    for j in range(4): a('v_cmp_eq_u32 s[%d:%d], %d, v24' % (30 + 2 * j, 31 + 2 * j, j))
    a('s_mov_b32 s38, %s' % f2u(1.0 / 576))
    a('v_mov_b32 v11, %s' % f2u(1e-5))

def run_groups(a, sc, groups, nslots_total, dma_for, hooks):
    def frag_reg(gi, k, n): return vFR + 16 * (gi % 2) + 4 * k
    def reads(gi):
        g = groups[gi]
        return ['ds_read_b128 %s, v%d offset:%d' % (vr(frag_reg(gi, k, 0), 4), vL[g['slot'] % 4], fi * 1024) for k, fi in enumerate(g['frags'])]
    a.wait_tag('dma%d' % groups[0]['slot']); a('s_barrier')
    for r in reads(0): a(r)
    for gi, g in enumerate(groups):
        nxt = groups[gi + 1] if gi + 1 < len(groups) else None
        seq = list(g.get('extra', []))
        for (acc, k, b, first) in g['mf']:
            seq.append('v_mfma_f32_16x16x32_bf16 %s, %s, %s, %s' % (vr(acc, 4), vr(frag_reg(gi, k, 0), 4), b, '0' if first else vr(acc, 4)))
        if ('begin', gi) in hooks: hooks[('begin', gi)]()
        for mi, m in enumerate(seq):
            scalar = None
            if mi == 0 and nxt is not None:
                def scalar(g=g, nxt=nxt, gi=gi):
                    if nxt['slot'] != g['slot']:
                        assert not any(it.tag in ('dma%d' % nxt['slot'], 'al%d' % (nxt['slot'] - 9)) for q in (sc.hi, sc.lo, sc.mem) for it in q), 'late loads for slot %d' % nxt['slot']
                        prewait(a, vr(frag_reg(gi, 0, 0), 16))
                        a.wait_tags(['dma%d' % nxt['slot'], 'al%d' % (nxt['slot'] - 9)])
                        if not (NOBAR and sc.n > 504): a('s_barrier')
                    rd = reads(gi + 1)
                    for r in rd: sc.push(sc.hi, r)
                    if nxt['slot'] != g['slot'] and g['slot'] + 4 < nslots_total:
                        for (t, pre, tag) in dma_for(g['slot'] + 4): sc.push(sc.mem, t, 1, tag, pre)
            elif mi == len(seq) - 1 and nxt is not None:
                def scalar(gi=gi): prewait(a, vr(frag_reg(gi + 1, 0, 0), 16))
            sc.mfma(m, scalar)
        if ('end', gi) in hooks: hooks[('end', gi)]()

def g1_groups():
    groups = []
    for s, fr in enumerate(w1_frag_list()):
        for g0 in range(0, 36, 3):
            c, mat, kk0 = fr[g0]
            mf = [(accreg(c, mat, sub), l, hreg(4 * (kk0 + l) + sub), kk0 + l == 0) for sub in range(4) for l in range(3)]
            g = dict(slot=s, frags=[g0, g0 + 1, g0 + 2], mf=mf, c=c, mat=mat, kk0=kk0)
            if s < 3 and c == 0 and mat == 0:
                g['extra'] = ['v_mfma_f32_16x16x32_bf16 %s, %s, %s, %s' % (vr(vGR + 4 * sub, 4), hreg(4 * (kk0 + l) + sub), hreg(4 * (kk0 + l) + sub), '0' if kk0 + l == 0 else vr(vGR + 4 * sub, 4))
                              for sub in range(4) for l in range(3)]
            groups.append(g)
    return groups

OACC = [vACC + 32 + 4 * i for i in range(16)] + [vGR, vGR + 4]
def g2_groups(slot0, breg0):
    groups = []
    for c in range(9):
        for t in range(9):
            mf = [(OACC[2 * t + sub], pr, hreg(breg0(c) + 2 * pr + sub), c == 0 and pr == 0) for sub in range(2) for pr in range(4)]
            groups.append(dict(slot=slot0 + c, frags=[4 * t + pr for pr in range(4)], mf=mf, c=c, t=t))
    return groups

def g2_epilogue(a, pol=''):
    T = [vT, vT + 4, vT + 8, vT + 12]
    n = 0
    for u in range(4):
        a('s_mov_b32 s%d, %d' % (sTC, u * 4 * 32768))
        for sub in range(2):
            P = T[n % 4]; n += 1
            for h in range(2):
                O = OACC[2 * (2 * u + h) + sub]
                for j in range(2): a('v_cvt_pk_bf16_f32 v%d, v%d, v%d' % (P + 2 * h + j, O + 2 * j, O + 2 * j + 1))
            a('buffer_store_dwordx4 %s, v%d, s[8:11], s%d offen offset:%d %s' % (vr(P, 4), vPO, sTC, sub * 256, pol))
    P = T[n % 4]
    for sub in range(2):
        O = OACC[16 + sub]
        for j in range(2): a('v_cvt_pk_bf16_f32 v%d, v%d, v%d' % (P + 2 * sub + j, O + 2 * j, O + 2 * j + 1))
    for j in range(2): a('v_permlane32_swap_b32 v%d, v%d' % (P + j, P + 2 + j))
    a('buffer_store_dwordx4 %s, v%d, s[8:11], 0 offen %s' % (vr(P, 4), vP8, pol))

def emit_now(a, items):
    for (t, pre, tag) in items:
        for p in pre: a(p)
        a(t, tag)

vFS = 252; vFL = 253; vFD = 254; vONE = 255
APOL = 'sc1'; APOL2 = 'sc1'; LPOL = 'sc1'; PF = 1; DLA = 0; CHK = 70; FAT = 100; FBT = 20; FCT = 110; GAP4 = 50; PB = 1; PC = 5

def flag_setup(a, layer):
    base = WS_FLAG + layer * 3 * 131072
    a('s_lshl_b32 s26, s2, 2\ns_add_u32 s26, s26, s%d\ns_lshl_b32 s26, s26, 7\ns_add_u32 s26, s26, %d' % (sWV, base))
    a('v_mov_b32 v24, s26\nv_cmp_eq_u32 vcc, 0, v21\nv_mov_b32 v%d, 1\nv_cndmask_b32 v%d, -1, v24, vcc' % (vONE, vFS))
    a('s_and_b32 s26, s2, 0xc7\ns_lshl_b32 s26, s26, 2\ns_lshr_b32 s27, s22, 2\ns_lshl_b32 s27, s27, 1\ns_add_u32 s26, s26, s27\ns_lshr_b32 s27, s%d, 1\ns_add_u32 s26, s26, s27\ns_lshl_b32 s26, s26, 7\ns_add_u32 s26, s26, %d' % (sWV, base))
    a('v_and_b32 v24, 7, v21\nv_lshlrev_b32 v24, 12, v24\nv_add_u32 v%d, s26, v24' % vFL)

def ffn_kernel(a, name, layer, st=False, idx=0):
    common_prologue(a, name, st)
    g1_setup(a)
    dma_for = lambda s: dma_items(s, 0, sW1) if s < 9 else dma_items(s, 9, sW2)
    H = lambda k0, k1: sum([hload_items(kk) for kk in range(k0, k1)], [])
    d1 = dma_for(1); d2 = dma_for(2); d3 = dma_for(3)
    order = dma_for(0) + H(0, 6) + d1 + H(6, 9) + d2[:4] + H(9, 12) + d2[4:] + H(12, 15) + d3[:4] + H(15, 18) + d3[4:]
    emit_now(a, order[:NPRE])
    g2_setup(a)
    flag_setup(a, layer)
    stat_setup(a)
    sc = Sched(a); sc.gap = GAP1
    groups = g1_groups(); n1 = len(groups)
    groups += g2_groups(9, lambda c: 8 * c)
    hooks = {}; slow = []
    def addhook(key, f):
        old = hooks.get(key)
        hooks[key] = f if old is None else (lambda: (old(), f()))
    def first():
        stamp(a, 1, st)
        for k, (t, pre, tag) in enumerate(order[NPRE:]): sc.push(sc.mem, t, 1, tag, pre)
    addhook(('begin', 0), first)
    def publish(stage, tag, delay):
        def f():
            a.wait_tag(tag)
            sc.push(sc.mem, 'buffer_store_dword v%d, v%d, s[8:11], s%d offen sc1' % (vONE, vFS, sTD), 1, None, ['s_mov_b32 s%d, %d' % (sTD, stage * 131072)], front=True)
        sc.on_issued(tag, 2, delay, f)
    def poll(stage, then):
        tag = 'fl%d' % stage
        sc.push(sc.mem, 'buffer_load_dword v%d, v%d, s[8:11], s%d offen sc1' % (vFD, vFL, sTE), 1, tag, ['s_mov_b32 s%d, %d' % (sTE, stage * 131072)], front=True)
        def f():
            a('v_cmp_ne_u32 vcc, 1, v%d' % vFD)
            def g():
                lab = '%s_slow%d' % (name, stage)
                a('s_cbranch_vccnz %s' % lab); a.label(lab + '_ret'); slow.append((lab, stage))
                then()
            sc.at(sc.n + 2, g)
        sc.on_issued(tag, 1, CHK, f)
    def aloads(cs):
        for c in cs:
            for (t, pre, tag) in aload_items(c, 8 * c, LPOL): sc.push(sc.mem, t, 1, tag, pre)
    ok = {'A': False, 'B': False, 'C': False}; nxt = [0]; free = [-1]; lim = [3]
    def feed():
        while nxt[0] < 9 and nxt[0] <= free[0] and nxt[0] <= lim[0] and ok['A' if nxt[0] <= 4 else ('B' if nxt[0] <= 7 else 'C')]:
            aloads([nxt[0]]); nxt[0] += 1
    def setok(k):
        def f(): ok[k] = True; feed()
        return f
    for gi, g in enumerate(groups[:n1]):
        if g['kk0'] == 15:
            def h(g=g):
                n = sc.n + 4
                fin = lambda c: [sc.push(sc.lo, t, cc, tag, pre, after=n) for (t, cc, tag, pre) in fin_items(c, APOL)]
                sig = lambda c: [sc.push(sc.lo, t, cc, after=n) for (t, cc) in sig_items(c)]
                if g['c'] == 0 and g['mat'] == 0:
                    for (t, c) in stat_items(): sc.push(sc.lo, t, c, after=n)
                if g['slot'] >= 3 or g['c'] == 0:
                    if g['mat'] == 0: sig(g['c'])
                    else: fin(g['c'])
                elif g['mat'] == 1:
                    sig(g['c']); fin(g['c'])
                if g['c'] == 2 and g['mat'] == 1: stamp(a, 2, st); sc.gap = GAP2
                if g['mat'] == 1 and g['c'] == 4: publish(0, 'as4', FAT)
                if g['mat'] == 1 and g['c'] == 7: publish(1, 'as7', FAT)
                if g['mat'] == 1 and g['c'] == 8: publish(2, 'as8', FCT); stamp(a, 3, st); sc.gap = GAP3
            addhook(('end', gi), h)
        if g['slot'] == 7 and g['mat'] == 1 and g['kk0'] == 0: addhook(('begin', gi), lambda: poll(0, setok('A')))
        if g['slot'] == 8 and g['mat'] == 0 and g['kk0'] == 0:
            def h2():
                sc.gap = GAP4
                def dl(tag):
                    if tag and tag.startswith('dma'): return int(tag[3:]) - 0.5
                    if tag and tag.startswith('al'): return 9 + int(tag[2:]) - DLA / 10.
                    return -1
                sc.dl = dl
            addhook(('begin', gi), h2)
        if g['slot'] == 8 and g['mat'] == 1:
            def h3(g=g): free[0] = (g['kk0'] + 3) // 2 - 1; feed()
            addhook(('end', gi), h3)
    for gi, g in enumerate(groups):
        if gi >= n1 and g['t'] == 0:
            def h4(g=g):
                lim[0] = g['c'] + 5; feed()
                if g['c'] == PB: poll(1, setok('B'))
                if g['c'] == PC: poll(2, setok('C'))
            addhook(('begin', gi), h4)
    for gi, g in enumerate(groups):
        if gi == 0 or groups[gi - 1]['slot'] != g['slot']: addhook(('begin', gi), lambda g=g: fstamp(a, 1 + g['slot'], st))
    run_groups(a, sc, groups, 18, dma_for, hooks)
    fstamp(a, 19, st)
    assert not sc.hi and not sc.mem and not sc.lo and not sc.ev and not sc.watch, (sc.hi, sc.mem, sc.lo, sc.ev, sc.watch)
    if PF:
        nx = 'k1l1_kernel' if layer == 0 else 'k4_kernel'
        prefetch_code(a, nx, nx + '_end', True, 256, 8192, 24, vFD, vFL)
    g2_epilogue(a, APOL2)
    stamp(a, 4, st)
    fstamp(a, 20, st)
    if st == 2: a.wait_all(force=True)
    fstamp(a, 21, st)
    stamp_out(a, 5, idx, st)
    a.label(name + '_end')
    a('s_endpgm')
    for (lab, stage) in slow:
        a.reset()
        a.label(lab)
        a('s_mov_b32 s28, %d\ns_mov_b32 s29, 0' % (stage * 131072))
        a.label(lab + '_l')
        a('buffer_load_dword v%d, v%d, s[8:11], s28 offen sc1' % (vFD, vFL))
        a('s_add_u32 s29, s29, 1')
        a('v_cmp_ne_u32 vcc, 1, v%d' % vFD)
        a('s_cmp_lt_u32 s29, 0x4000\ns_nop 3')
        a('s_cbranch_vccz %s_ret\ns_cbranch_scc1 %s_l\ns_branch %s_ret' % (lab, lab, lab))
```

```python
from ab import *
from layout import *
from ffn import f2u, SLOT
import math
import ffn
PF = 1; POL = ' sc1'; POLZ = ' sc1'

sST = 60
def stamp(a, k, on):
    if on == 1:
        a('s_memtime %s' % sr(sST + 2 * k, 2))
        a('s_memrealtime %s' % sr(sST + 16 + 2 * k, 2))
def stamp_begin(a, on):
    if on == 1:
        a('s_memrealtime %s' % sr(sST - 2, 2)); stamp(a, 0, on)
def stamp_out(a, nst, idx, on, swave, srd):
    if on != 1: return
    lab = 'L_st_%d' % len(a.out)
    a('s_memrealtime %s' % sr(sST + 2 * nst, 2))
    a.wait_all(force=True)
    a('s_cmp_ge_u32 s%d, 4\ns_cbranch_scc1 %s' % (swave, lab))
    a('s_cmp_ge_u32 s2, 256\ns_cbranch_scc1 %s' % lab)
    a('s_lshl_b32 s56, s2, 10\ns_lshl_b32 s57, s%d, 8\ns_add_u32 s56, s56, s57\ns_add_u32 s56, s56, %d' % (swave, WS_STAMP + idx * 262144))
    a('s_mov_b64 exec, 1')
    a('v_mov_b32 v1, 0')
    for k in range(-1, nst + 1):
        a('v_mov_b32 v2, s%d\nv_mov_b32 v3, s%d' % (sST + 2 * k, sST + 2 * k + 1))
        a('buffer_store_dwordx2 v[2:3], v1, %s, s56 offen offset:%d' % (srd, 8 * (k + 1)))
        a('s_nop 1')
    for k in range(nst):
        a('v_mov_b32 v2, s%d\nv_mov_b32 v3, s%d' % (sST + 16 + 2 * k, sST + 17 + 2 * k))
        a('buffer_store_dwordx2 v[2:3], v1, %s, s56 offen offset:%d' % (srd, 8 * (13 + k)))
        a('s_nop 1')
    a.label(lab)

def srd(a, d, p, nbytes):
    a('s_mov_b32 s%d, s%d\ns_mov_b32 s%d, s%d\ns_mov_b32 s%d, %d\ns_mov_b32 s%d, 0x20000' % (d, p, d + 1, p + 1, d + 2, nbytes, d + 3))

def repack_body(a, name, stask, swave, ldsbase):
    a('s_load_dwordx4 s[4:7], s[0:1], 48')
    a('s_load_dwordx2 s[12:13], s[0:1], 64')
    a('s_load_dwordx2 s[14:15], s[0:1], 88')
    a('v_and_b32 v1, 63, v0')
    for i in range(9):
        a('v_add_u32 v2, %d, v1' % (64 * i))
        a('v_mul_u32_u24 v3, 3641, v2\nv_lshrrev_b32 v3, 16, v3')
        a('v_mul_u32_u24 v4, 18, v3\nv_sub_u32 v%d, v2, v4' % (20 + i))
        a('v_mov_b32 v%d, v3' % (10 + i))
    a('s_cmp_lt_u32 s%d, 288' % stask)
    a('s_waitcnt lgkmcnt(0)')
    a('s_mov_b32 s16, s14\ns_mov_b32 s17, s15\ns_mov_b32 s18, 0x10000000\ns_mov_b32 s19, 0x20000')
    a('s_mov_b32 s10, %d\ns_mov_b32 s11, 0x20000' % (D * F * 2))
    a('v_lshrrev_b32 v2, 5, v1\nv_lshlrev_b32 v2, 4, v2\nv_bfe_u32 v3, v1, 2, 3\nv_add_u32 v2, v2, v3')
    a('v_mul_u32_u24 v2, 288, v2\nv_add_u32 v2, s%d, v2' % ldsbase)
    a('v_and_b32 v3, 3, v1\nv_lshlrev_b32 v4, 3, v3')
    a('v_add_u32 v5, v2, v4')
    a('v_lshlrev_b32 v8, 4, v1')
    a('s_mov_b32 m0, s%d' % ldsbase)
    a.fence()
    st = a.state()
    a('s_cbranch_scc0 %s_w2' % name)
    a('s_cmp_ge_u32 s%d, 144' % stask)
    a('s_cselect_b32 s8, s6, s4\ns_cselect_b32 s9, s7, s5\ns_cselect_b32 s20, 1, 0\ns_cselect_b32 s21, 144, 0')
    a('s_sub_u32 s21, s%d, s21\ns_lshr_b32 s22, s21, 3\ns_and_b32 s21, s21, 7\ns_lshl_b32 s21, s21, 2\ns_add_u32 s21, s21, s%d' % (stask, swave))
    a('s_lshl_b32 s23, s22, 4\ns_mul_i32 s24, s21, 288\ns_movk_i32 s25, 9216')
    for i in range(9):
        R = 10 + i
        a('v_lshrrev_b32 v30, 4, v%d\nv_lshlrev_b32 v30, 3, v30\nv_and_b32 v31, 4, v%d\nv_add3_u32 v30, v30, v31, s23' % (R, R))
        a('v_sub_u32 v31, 572, v30\nv_and_b32 v32, 8, v%d\nv_cmp_eq_u32 vcc, 0, v32\nv_and_b32 v32, 3, v%d' % (R, R))
        a('v_cndmask_b32 v30, v31, v30, vcc\nv_add_u32 v30, v30, v32')
        a('v_lshlrev_b32 v31, 4, v%d\nv_mad_u32_u24 v30, v30, s25, v31' % (20 + i))
        if i: a('s_add_u32 m0, m0, 1024')
        a('buffer_load_dwordx4 v30, s[8:11], s24 offen lds')
    a('s_mul_i32 s26, s21, %d' % (9 * SLOT))
    if WS_W1: a('s_add_u32 s26, s26, %d' % WS_W1)
    a('s_mul_i32 s27, s22, 43\ns_lshr_b32 s27, s27, 7\ns_mul_i32 s28, s27, 3\ns_sub_u32 s28, s22, s28')
    a('s_lshl_b32 s31, s27, 1\ns_add_u32 s31, s31, s20\ns_mul_i32 s31, s31, 3\ns_add_u32 s31, s31, s28\ns_lshl_b32 s31, s31, 10\ns_add_u32 s31, s31, s26')
    a('s_mul_i32 s27, s27, 18\ns_mul_i32 s29, s20, 9\ns_add_u32 s27, s27, s29\ns_add_u32 s27, s27, s28\ns_lshl_b32 s27, s27, 10\ns_add_u32 s27, s27, s26')
    a('s_mul_i32 s29, s20, 18\ns_add_u32 s29, s29, s22\ns_lshl_b32 s29, s29, 10\ns_add_u32 s29, s29, s26')
    a.wait_all(force=True)
    for c in range(9):
        for h in range(2):
            a('ds_read_b64_tr_b16 %s, v5 offset:%d' % (vr(20 + 4 * c + 2 * h, 2), 32 * c + h * 8 * 288))
    for c in range(9):
        a('s_add_u32 s30, s%d, %d' % ((27, c * 3072) if c < 3 else (29 if c < 8 else 31, c * SLOT)))
        a('buffer_store_dwordx4 %s, v8, s[16:19], s30 offen' % vr(20 + 4 * c, 4) + POL)
    a('s_branch %s_done' % name)
    a.restore(st)
    a.label(name + '_w2')
    a('s_mov_b32 s8, s12\ns_mov_b32 s9, s13')
    a('s_sub_u32 s20, s%d, 288\ns_and_b32 s21, s20, 3\ns_lshr_b32 s20, s20, 2' % stask)
    a('s_mul_i32 s22, s20, 57\ns_lshr_b32 s22, s22, 9\ns_mul_i32 s23, s22, 9\ns_sub_u32 s23, s20, s23')
    a('s_lshl_b32 s24, s22, 2\ns_add_u32 s24, s24, s21\ns_mul_i32 s24, s24, 288\ns_lshl_b32 s25, s23, 4\ns_add_u32 s24, s24, s25\ns_mul_i32 s24, s24, 1152')
    a('s_mul_i32 s25, s%d, 144\ns_sub_u32 s26, %d, s25\ns_movk_i32 s27, 1152' % (swave, 1008 - 144))
    a('v_mov_b32 v33, s25\nv_mov_b32 v34, s26')
    for i in range(9):
        R = 10 + i
        a('v_lshrrev_b32 v30, 4, v%d\nv_mul_u32_u24 v30, 144, v30\nv_and_b32 v31, 4, v%d\nv_lshl_add_u32 v30, v31, 1, v30' % (R, R))
        a('v_cmp_gt_u32 vcc, 9, v%d\nv_bfe_u32 v31, v%d, 3, 1\nv_lshl_add_u32 v30, v31, 2, v30\nv_and_b32 v31, 3, v%d\nv_add_u32 v30, v30, v31' % (20 + i, R, R))
        a('v_cndmask_b32 v31, v34, v33, vcc\nv_lshl_add_u32 v31, v%d, 4, v31\nv_mad_u32_u24 v30, v30, s27, v31' % (20 + i))
        if i: a('s_add_u32 m0, m0, 1024')
        a('buffer_load_dwordx4 v30, s[8:11], s24 offen lds')
    a('v_sub_u32 v6, v2, v4\nv_add_u32 v6, 184, v6')
    a('v_cmp_gt_u32 vcc, 2, v3\nv_add_u32 v30, 128, v5\nv_subrev_u32 v31, 16, v6\nv_cndmask_b32 v7, v31, v30, vcc')
    a('s_lshl_b32 s26, s22, 2\ns_add_u32 s26, s26, s%d\ns_mul_i32 s26, s26, 9\ns_add_u32 s26, s26, s23\ns_mul_i32 s26, s26, %d\ns_lshl_b32 s27, s21, 10\ns_add_u32 s26, s26, s27\ns_add_u32 s26, s26, %d' % (swave, SLOT, WS_W2))
    a.wait_all(force=True)
    for t in range(9):
        for h in range(2):
            if t == 8: ad, off = 7, 0
            elif t % 2 == 0: ad, off = 5, 32 * (t // 2)
            else: ad, off = 6, 32 * (3 - t // 2)
            a('ds_read_b64_tr_b16 %s, v%d offset:%d' % (vr(20 + 4 * t + 2 * h, 2), ad, off + h * 8 * 288))
    for t in range(9):
        a('s_add_u32 s30, s26, %d' % (t * 4096))
        a('buffer_store_dwordx4 %s, v8, s[16:19], s30 offen' % vr(20 + 4 * t, 4) + POL)
    a.label(name + '_done')
    a.reset()

def repack_kernel(a, name, st=False, idx=0):
    kernel_begin(a, name)
    stamp_begin(a, st)
    a('s_cmp_ge_u32 s2, 432\ns_cbranch_scc1 %s_end' % name)
    a('v_lshrrev_b32 v1, 6, v0\nv_readfirstlane_b32 s3, v1\ns_mul_i32 s41, s3, 9216')
    if PF: prefetch_code(a, 'k1l0_kernel', 'k4_kernel_end', True, 256, 98304, 42, 57, 58)
    repack_body(a, name, 2, 3, 41)
    stamp(a, 1, st); stamp(a, 2, st); stamp(a, 3, st); stamp(a, 4, st)
    stamp_out(a, 5, idx, st, 3, 's[16:19]')
    a.label(name + '_end')
    a('s_endpgm')

TS = 1312; RS = 144
L_H = 0; L_STAT = 10752; L_Z = 12288; K1_LDS = 12288 + 290 * 32

def rows_head(a, name, layer, st, final=False):
    kernel_begin(a, name)
    stamp_begin(a, st)
    a('s_load_dwordx2 s[4:5], s[0:1], 88')
    a('s_load_dwordx2 s[6:7], s[0:1], %d' % (72 if final else 0))
    a('s_cmp_ge_u32 s2, 256\ns_cbranch_scc1 %s_end' % name)
    a('v_lshrrev_b32 v1, 6, v0\nv_and_b32 v2, 7, v0\nv_readfirstlane_b32 s3, v1\nv_lshrrev_b32 v3, 3, v0\nv_and_b32 v1, 63, v0')
    a('s_and_b32 s20, s2, 3\ns_bfe_u32 s21, s2, 0x10002\ns_lshr_b32 s22, s2, 7\ns_lshl_b32 s22, s22, 1\ns_add_u32 s21, s21, s22\ns_bfe_u32 s22, s2, 0x40003')
    a('s_lshl_b32 s23, s22, 2\ns_add_u32 s23, s23, s21\ns_lshl_b32 s24, s23, 5\ns_lshl_b32 s25, s20, 3\ns_add_u32 s24, s24, s25')
    a('v_lshlrev_b32 v4, 11, v3\nv_add3_u32 v4, v4, v2, s24\nv_lshlrev_b32 v4, 4, v4')
    if layer == 0 or final:
        a('v_add_u32 v5, s25, v2\nv_lshlrev_b32 v5, 6, v5\nv_add_u32 v5, s23, v5\nv_mul_u32_u24 v5, 1152, v5')
        a('v_lshlrev_b32 v7, 3, v3\nv_sub_u32 v6, v5, v7\nv_add_u32 v5, v5, v7')
    a('s_waitcnt lgkmcnt(0)')
    srd(a, 8, 4, 0x10000000)
    if layer == 0 or final: srd(a, 12, 6, S * D * 2)
    if layer == 0:
        a('buffer_load_dwordx2 v[8:9], v5, s[12:15], 0 offen')
        a('buffer_load_dwordx2 v[10:11], v6, s[12:15], 0 offen offset:1144')
    else:
        for k, off in enumerate([WS_X1] + [WS_PART + q * XBYTES for q in range(4)]):
            a('s_mov_b32 s26, %d' % off)
            a('buffer_load_dwordx4 %s, v4, s[8:11], s26 offen' % vr(8 + 4 * k, 4))

def rows_sum(a, layer, X):
    for k in range(1 if layer == 0 else 5):
        T = X if k == 0 else 36
        for j in range(4):
            a('v_lshlrev_b32 v%d, 16, v%d\nv_and_b32 v%d, 0xffff0000, v%d' % (T + 2 * j, 8 + 4 * k + j, T + 2 * j + 1, 8 + 4 * k + j))
        if k:
            for j in range(4): a('v_pk_add_f32 %s, %s, %s' % (vr(X + 2 * j, 2), vr(X + 2 * j, 2), vr(T + 2 * j, 2)))

def k4_kernel(a, name, st=False, idx=0):
    rows_head(a, name, 1, st, final=True)
    a('v_add_u32 v7, s24, v2\nv_lshlrev_b32 v7, 2, v7')
    for k in range(4):
        a('s_mov_b32 s26, %d' % (WS_MU + k * 8192))
        a('buffer_load_dword v%d, v7, s[8:11], s26 offen' % (44 + k))
    stamp(a, 1, st)
    rows_sum(a, 1, 28)
    stamp(a, 2, st)
    a('v_add_f32 v44, v44, v45\nv_add_f32 v46, v46, v47\nv_sub_f32 v44, v44, v46')
    for j in range(4): a('v_pk_add_f32 %s, %s, v[44:45] op_sel_hi:[1,0]' % (vr(28 + 2 * j, 2), vr(28 + 2 * j, 2)))
    for j in range(4): a('v_cvt_pk_bf16_f32 v%d, v%d, v%d' % (8 + j, 28 + 2 * j, 29 + 2 * j))
    a('buffer_store_dwordx2 v[8:9], v5, s[12:15], 0 offen')
    a('buffer_store_dwordx2 v[10:11], v6, s[12:15], 0 offen offset:1144')
    stamp(a, 3, st); stamp(a, 4, st)
    stamp_out(a, 5, idx, st, 3, 's[8:11]')
    a.label(name + '_end')
    a('s_endpgm')

def dft3(a, x0, x1, x2, y0, y1, y2, T, sC):
    a('v_add_f32 v%d, v%d, v%d\nv_add_f32 v%d, v%d, v%d' % (T, x1[0], x2[0], T + 1, x1[1], x2[1]))
    a('v_sub_f32 v%d, v%d, v%d\nv_sub_f32 v%d, v%d, v%d' % (T + 2, x1[0], x2[0], T + 3, x1[1], x2[1]))
    a('v_fma_f32 v%d, v%d, -0.5, v%d\nv_fma_f32 v%d, v%d, -0.5, v%d' % (T + 4, T, x0[0], T + 5, T + 1, x0[1]))
    a('v_add_f32 v%d, v%d, v%d\nv_add_f32 v%d, v%d, v%d' % (y0[0], x0[0], T, y0[1], x0[1], T + 1))
    a('v_fma_f32 v%d, v%d, s%d, v%d\nv_fma_f32 v%d, -v%d, s%d, v%d' % (y1[0], T + 3, sC, T + 4, y1[1], T + 2, sC, T + 5))
    a('v_fma_f32 v%d, -v%d, s%d, v%d\nv_fma_f32 v%d, v%d, s%d, v%d' % (y2[0], T + 3, sC, T + 4, y2[1], T + 2, sC, T + 5))

def k1_kernel(a, name, layer, st=False, idx=0):
    rows_head(a, name, layer, st)
    X = 28
    AD = 44
    BT = 52
    ZA = 68
    AA = 77
    if layer == 0:
        a('v_lshrrev_b32 v36, 2, v0\nv_lshlrev_b32 v36, 17, v36\nv_and_b32 v37, 3, v0\nv_lshl_add_u32 v36, v37, 7, v36\nv_cmp_gt_u32 vcc, 24, v0\nv_mov_b32 v37, 0\nv_cndmask_b32 v36, -1, v36, vcc')
        a('s_lshl_b32 s26, s2, 9\ns_add_u32 s26, s26, %d' % WS_FLAG)
        a('buffer_store_dword v37, v36, s[8:11], s26 offen' + POL)
    if PF: prefetch_code(a, 'k2l%d_kernel' % layer, 'k2l%d_kernel_end' % layer, True, 576, 8192, 54, 36, 108)
    a('v_mul_u32_u24 v36, %d, v2' % TS)
    a('v_lshlrev_b32 v37, 2, v3\nv_sub_u32 v38, 572, v37')
    a('s_movk_i32 s27, %d' % RS)
    for half in range(2):
        d0 = 37 + half
        a('v_mul_u32_u24 v39, 7282, v%d\nv_lshrrev_b32 v39, 16, v39\nv_mul_u32_u24 v39, 9, v39\nv_sub_u32 v39, v%d, v39' % (d0, d0))
        a('v_and_b32 v40, 63, v%d\nv_lshl_add_u32 v40, v40, 1, v36' % d0)
        for i in range(4):
            if i:
                a('v_add_u32 v41, %d, v39\nv_add_u32 v42, %d, v39\nv_min_u32 v41, v41, v42' % (i, i - 9))
                a('v_mad_u32_u24 v%d, v41, s27, v40' % (AD + 4 * half + i))
            else:
                a('v_mad_u32_u24 v%d, v39, s27, v40' % (AD + 4 * half))
    a('v_cmp_ne_u32 s[28:29], 0, v3')
    a('v_and_b32 v36, 15, v1\nv_lshrrev_b32 v37, 4, v1')
    a('s_and_b32 s30, s3, 1\ns_lshr_b32 s31, s3, 1\ns_lshl_b32 s31, s31, 4\ns_lshl_b32 s32, s30, 2')
    a('v_add_u32 v38, s31, v36')
    a('v_cvt_f32_u32 v39, v38\nv_mul_f32 v39, %s, v39' % f2u(1 / 64.))
    a('v_lshlrev_b32 v40, 3, v37\nv_cvt_f32_u32 v40, v40\nv_mul_f32 v40, v40, v39')
    for kk in range(2):
        for i2 in range(4):
            for u in range(2):
                a('v_fmamk_f32 v%d, v39, %s, v40' % (41 + u, f2u(32 * kk + 2 * i2 + u)))
            a('v_cos_f32 v78, v41\nv_cos_f32 v79, v42\nv_sin_f32 v80, v41\nv_sin_f32 v81, v42')
            a('v_cvt_pk_f16_f32 v%d, v78, v79\nv_cvt_pk_f16_f32 v%d, -v80, -v81' % (BT + 8 * kk + i2, BT + 8 * kk + 4 + i2))
    a('v_mul_u32_u24 v39, 9, v38\nv_add_u32 v40, s32, v37\nv_lshlrev_b32 v40, 2, v40\nv_add_u32 v40, %d, v40' % L_Z)
    a('s_movk_i32 s33, 288')
    for e2 in range(9):
        a('v_add_u32 v41, %d, v39\nv_add_u32 v42, %d, v39\nv_min_u32 v41, v41, v42' % (64 * e2, (64 * e2 - 576) & 0xffffffff))
        a('v_sub_u32 v42, 576, v41\nv_cmp_lt_u32 s[%d:%d], s33, v41\nv_min_u32 v41, v41, v42\nv_lshl_add_u32 v%d, v41, 5, v40' % (34 + 2 * e2, 35 + 2 * e2, ZA + e2))
    a('v_cmp_ge_u32 s[52:53], 32, v38')
    a('v_lshrrev_b32 v39, 2, v36\nv_add_u32 v39, s32, v39\nv_mul_u32_u24 v39, %d, v39\nv_and_b32 v40, 3, v36\nv_mad_u32_u24 v39, v40, s27, v39\nv_lshl_add_u32 v%d, v37, 4, v39' % (TS, AA))
    a('v_lshlrev_b32 v82, 3, v2\ns_lshl_b32 s26, s3, 6\nv_add_u32 v83, s26, v82')
    stamp(a, 1, st)
    rows_sum(a, layer, X)
    a('v_pk_add_f32 v[36:37], v[%d:%d], v[%d:%d]\nv_pk_add_f32 v[38:39], v[%d:%d], v[%d:%d]' % (X, X + 1, X + 2, X + 3, X + 4, X + 5, X + 6, X + 7))
    a('v_pk_mul_f32 v[40:41], v[%d:%d], v[%d:%d]' % (X, X + 1, X, X + 1))
    a('v_pk_add_f32 v[36:37], v[36:37], v[38:39]')
    for j in range(1, 4): a('v_pk_fma_f32 v[40:41], %s, %s, v[40:41]' % (vr(X + 2 * j, 2), vr(X + 2 * j, 2)))
    a('v_add_f32 v36, v36, v37\nv_add_f32 v37, v40, v41')
    a('v_add_f32_dpp v36, v36, v36 row_ror:8 row_mask:0xf bank_mask:0xf\nv_add_f32_dpp v37, v37, v37 row_ror:8 row_mask:0xf bank_mask:0xf')
    for sw in ('v_permlane16_swap_b32', 'v_permlane32_swap_b32'):
        a('v_mov_b32 v38, v36\nv_mov_b32 v39, v37')
        a('%s v38, v36\n%s v39, v37' % (sw, sw))
        a('v_pk_add_f32 v[36:37], v[36:37], v[38:39]')
    a('ds_write_b64 v83, v[36:37] offset:%d' % L_STAT)
    a.wait_all(vm=False); a('s_barrier')
    for w in range(9): a('ds_read_b64 %s, v82 offset:%d' % (vr(8 + 2 * w, 2), L_STAT + 64 * w))
    for w in (0, 2, 4, 6): a('v_pk_add_f32 %s, %s, %s' % (vr(8 + 2 * w, 2), vr(8 + 2 * w, 2), vr(10 + 2 * w, 2)))
    a('v_pk_add_f32 v[8:9], v[8:9], v[12:13]\nv_pk_add_f32 v[16:17], v[16:17], v[20:21]\nv_pk_add_f32 v[8:9], v[8:9], v[24:25]\nv_pk_add_f32 v[8:9], v[8:9], v[16:17]')
    a('v_mul_f32 v8, %s, v8\nv_mul_f32 v9, %s, v9' % (f2u(1 / 576.), f2u(1 / 576.)))
    a('v_fma_f32 v9, -v8, v8, v9\nv_max_f32 v9, 0, v9\nv_add_f32 v9, %s, v9\nv_rsq_f32 v10, v9' % f2u(1e-5))
    for j in range(4): a('v_pk_add_f32 %s, %s, v[8:9] op_sel_hi:[1,0] neg_lo:[0,1] neg_hi:[0,1]' % (vr(X + 2 * j, 2), vr(X + 2 * j, 2)))
    for j in range(4): a('v_pk_mul_f32 %s, %s, v[10:11] op_sel_hi:[1,0]' % (vr(12 + 2 * j, 2), vr(X + 2 * j, 2)))
    a('v_cndmask_b32 v12, 0, v12, s[28:29]')
    for j in range(4): a('v_cvt_pk_f16_f32 v%d, v%d, v%d' % (20 + j, 12 + 2 * j, 13 + 2 * j))
    for j in range(4):
        half, i = j // 2, 2 * (j % 2)
        a('ds_write_b16 v%d, v%d offset:%d' % (AD + 4 * half + i, 20 + j, L_H + 2 * i))
        a('ds_write_b16_d16_hi v%d, v%d offset:%d' % (AD + 4 * half + i + 1, 20 + j, L_H + 2 * i + 2))
    for j in range(4): a('v_cvt_pk_bf16_f32 v%d, v%d, v%d' % (24 + j, X + 2 * j, X + 1 + 2 * j))
    a('s_mov_b32 s26, %d' % WS_X0)
    a('buffer_store_dwordx4 v[24:27], v4, s[8:11], s26 offen' + POL)
    a('v_add_u32 v36, s24, v2\nv_lshlrev_b32 v36, 2, v36\nv_cndmask_b32 v36, v36, -1, s[28:29]')
    a('s_mov_b32 s26, %d' % (WS_MU + layer * 8192))
    a('s_cmp_eq_u32 s3, 0\ns_cbranch_scc0 %s_nomu' % name)
    a('buffer_store_dword v8, v36, s[8:11], s26 offen')
    a.label(name + '_nomu')
    a.wait_all(vm=False); a('s_barrier')
    stamp(a, 2, st)
    a('s_cmp_ge_u32 s3, 6\ns_cbranch_scc1 %s_skip' % name)
    st0 = a.state()
    AF = 8; RE = 84; IM = 96
    for t in range(3):
        for kk in range(2):
            a('ds_read_b128 %s, v%d offset:%d' % (vr(AF + 8 * t + 4 * kk, 4), AA, L_H + 3 * t * RS + 64 * kk))
    a('s_mov_b32 s26, %s' % f2u(math.sqrt(3) / 2))
    for t in range(3):
        for part, O in ((0, RE), (1, IM)):
            for kk in range(2):
                a('v_mfma_f32_16x16x32_f16 %s, %s, %s, %s' % (vr(O + 4 * t, 4), vr(AF + 8 * t + 4 * kk, 4), vr(BT + 8 * kk + 4 * part, 4), vr(O + 4 * t, 4) if kk else '0'))
    U = lambda t, b: (RE + 4 * t + b, IM + 4 * t + b)
    for b in range(3): dft3(a, U(0, b), U(1, b), U(2, b), U(0, b), U(1, b), U(2, b), 36 if b % 2 else 8, 26)
    for b in (1, 2):
        for c in (1, 2):
            ang = 2 * math.pi * b * c / 9
            r, i = U(c, b); T = 8 + 2 * (2 * (b - 1) + c - 1)
            a('v_mul_f32 v%d, %s, v%d\nv_mul_f32 v%d, %s, v%d' % (T, f2u(math.sin(ang)), i, T + 1, f2u(-math.sin(ang)), r))
            a('v_fmamk_f32 v%d, v%d, %s, v%d\nv_fmamk_f32 v%d, v%d, %s, v%d' % (r, r, f2u(math.cos(ang)), T, i, i, f2u(math.cos(ang)), T + 1))
    a('s_mov_b64 exec, s[52:53]')
    for c in range(3):
        dft3(a, U(c, 0), U(c, 1), U(c, 2), U(c, 0), U(c, 1), U(c, 2), 36 if c % 2 else 16, 26)
        for f in range(3):
            e2 = c + 3 * f; r, i = U(c, f)
            a('v_cndmask_b32 v%d, v%d, -v%d, s[%d:%d]' % (i, i, i, 34 + 2 * e2, 35 + 2 * e2))
        for f in range(3):
            r, i = U(c, f); a('v_cvt_pk_f16_f32 v%d, v%d, v%d' % (r, r, i))
        for f in range(3):
            a('ds_write_b32 v%d, v%d' % (ZA + c + 3 * f, U(c, f)[0]))
    a('s_mov_b64 exec, -1')
    a.wait_all(vm=False)
    a.fence()
    a.label(name + '_skip')
    a('s_barrier')
    stamp(a, 3, st)
    a('v_lshlrev_b32 v36, 4, v0')
    a('ds_read_b128 v[8:11], v36 offset:%d' % L_Z)
    a('ds_read_b128 v[12:15], v36 offset:%d' % (L_Z + 288 * 32))
    a('v_lshrrev_b32 v37, 1, v0\nv_lshlrev_b32 v37, 13, v37\nv_and_b32 v38, 16, v36\nv_add_u32 v37, v37, v38')
    a('s_lshl_b32 s26, s21, 11\ns_lshl_b32 s27, s20, 9\ns_add_u32 s26, s26, s27\ns_lshl_b32 s27, s22, 5\ns_add_u32 s26, s26, s27\ns_add_u32 s26, s26, %d' % WS_Z)
    a('buffer_store_dwordx4 v[8:11], v37, s[8:11], s26 offen' + POLZ)
    a('s_cmp_eq_u32 s3, 0\ns_cbranch_scc0 %s_fin' % name)
    a('s_add_u32 s26, s26, %d\ns_mov_b64 exec, 3' % (288 * 8192))
    a('buffer_store_dwordx4 v[12:15], v37, s[8:11], s26 offen' + POLZ)
    a('s_mov_b64 exec, -1')
    a.label(name + '_fin')
    a.reset()
    stamp(a, 4, st)
    stamp_out(a, 5, idx, st, 3, 's[8:11]')
    a.label(name + '_end')
    a('s_endpgm')

YN = 272; YW = 4352; K2_LDS = 5 * YW

def k2_kernel(a, name, layer, st=False, idx=0):
    kernel_begin(a, name)
    stamp_begin(a, st)
    a('s_load_dwordx2 s[4:5], s[0:1], 88')
    a('s_cmp_ge_u32 s2, 144\ns_cbranch_scc1 %s_end' % name)
    a('v_lshrrev_b32 v1, 6, v0\nv_and_b32 v2, 63, v0\nv_readfirstlane_b32 s3, v1')
    a('s_and_b32 s20, s2, 7\ns_mul_i32 s20, s20, 9\ns_lshr_b32 s21, s2, 4\ns_add_u32 s20, s20, s21\ns_bfe_u32 s21, s2, 0x10003')
    a('s_lshl_b32 s22, s20, 2\ns_add_u32 s22, s22, s3\ns_lshl_b32 s22, s22, 13\ns_add_u32 s22, s22, %d\ns_add_u32 s23, s22, 4096' % WS_Z)
    a('v_lshlrev_b32 v3, 5, v2')
    a('v_lshrrev_b32 v4, 5, v2\nv_lshlrev_b32 v4, 14, v4\nv_and_b32 v5, 31, v2\nv_lshl_add_u32 v4, v5, 4, v4')
    a('s_lshl_b32 s24, s21, 3\ns_lshl_b32 s25, s20, 15')
    for u in range(4):
        a('s_lshl_b32 s26, s3, 2\ns_add_u32 s26, s26, %d\ns_add_u32 s27, s26, s24\ns_sub_u32 s28, 40, s27\ns_cmp_lt_u32 s26, 8\ns_cselect_b32 s27, s27, s28\ns_cmp_eq_u32 s27, 32\ns_cselect_b32 s%d, 16, s27' % (u, 30 + u))
        a('s_lshl_b32 s27, s%d, 9\ns_add_u32 s%d, s27, s25' % (30 + u, 34 + u))
    a('s_waitcnt lgkmcnt(0)')
    srd(a, 8, 4, 0x10000000)
    ZF = 16
    for t in range(4):
        for kk in range(2):
            a('buffer_load_dwordx4 %s, v3, s[8:11], s%d offen offset:%d' % (vr(ZF + 8 * t + 4 * kk, 4), 22 + t // 2, (t % 2) * 2048 + 16 * kk))
    XR = 48
    for u in range(4):
        a('s_add_u32 s27, s%d, %d' % (34 + u, WS_X0))
        a('buffer_load_dwordx4 %s, v4, s[8:11], s27 offen' % vr(XR + 4 * u, 4))
    if PF: prefetch_code(a, 'ffn%d_kernel' % layer, 'ffn%d_kernel_end' % layer, True, 320, 40960, 38, 6, 15)
    B1 = 64
    TC = 80; TSN = 96
    A2 = 112
    a('v_and_b32 v6, 15, v2\nv_lshrrev_b32 v7, 4, v2')
    a('v_add_u32 v8, s24, v6\nv_sub_u32 v9, 40, v8\nv_cmp_gt_u32 vcc, 8, v6\nv_cndmask_b32 v8, v9, v8, vcc\nv_cmp_eq_u32 vcc, 32, v8\nv_cndmask_b32 v8, v8, 16, vcc')
    a('v_cvt_f32_u32 v8, v8\nv_cvt_f32_u32 v9, v7')
    a('v_mul_f32 v10, %s, v8\nv_mul_f32 v11, %s, v9\nv_mul_f32 v11, v11, v10' % (f2u(1 / 32.), f2u(8.)))
    for kk in range(2):
        for i in range(4):
            a('v_fmamk_f32 v12, v10, %s, v11' % f2u(4 * kk + i))
            a('v_cos_f32 v13, v12\nv_sin_f32 v14, v12')
            a('v_cvt_pk_f16_f32 v%d, v13, v14\nv_cvt_pk_f16_f32 v%d, -v14, v13' % (B1 + 8 * kk + i, B1 + 8 * kk + 4 + i))
    a('v_mul_f32 v10, %s, v8\nv_mul_f32 v11, %s, v9\nv_mul_f32 v12, v11, v10' % (f2u(1 / 2048.), f2u(16.)))
    for t in range(4):
        for j in range(4):
            a('v_fmamk_f32 v13, v10, %s, v12' % f2u(4 * j + t))
            a('v_cos_f32 v%d, v13\nv_sin_f32 v%d, v13' % (TC + 4 * t + j, TSN + 4 * t + j))
    a('v_and_b32 v8, 7, v6\nv_lshlrev_b32 v8, 1, v8\nv_lshrrev_b32 v10, 3, v6\nv_add_u32 v8, v8, v10\nv_cvt_f32_u32 v8, v8\nv_mul_f32 v10, %s, v8\nv_mul_f32 v12, v11, v10' % f2u(1 / 64.))
    for t in range(4):
        for j2 in range(2):
            for u in range(2): a('v_fmamk_f32 v%d, v10, %s, v12' % (13 + u, f2u(4 * (2 * j2 + u) + t)))
            a('v_cos_f32 v8, v13\nv_cos_f32 v9, v14\nv_sin_f32 v13, v13\nv_sin_f32 v14, v14')
            a('v_cvt_pk_f16_f32 v%d, v8, v9\nv_cvt_pk_f16_f32 v%d, v13, v14' % (A2 + 4 * t + j2, A2 + 4 * t + 2 + j2))
    a('s_mul_i32 s26, s3, %d' % YW)
    a('v_mul_u32_u24 v8, %d, v6\nv_lshrrev_b32 v9, 1, v7\nv_lshl_add_u32 v8, v9, 7, v8\nv_and_b32 v9, 1, v7\nv_lshl_add_u32 v8, v9, 4, v8\nv_add_u32 v8, s26, v8' % YN)
    a('s_mul_i32 s26, s3, %d\ns_xor_b32 s27, s3, 2\ns_mul_i32 s27, s27, %d' % (4 * YN, 4 * YN))
    a('v_lshl_add_u32 v9, v2, 2, s26')
    a('v_sub_u32 v12, 63, v2\nv_lshl_add_u32 v10, v12, 2, s27')
    a('s_and_b32 s28, s30, 15\ns_cmp_eq_u32 s28, 0\ns_cselect_b32 s27, s26, s27')
    a('v_sub_u32 v13, 32, v2\nv_and_b32 v13, 31, v13\nv_sub_u32 v14, 95, v2\nv_cmp_gt_u32 vcc, 32, v2\nv_cndmask_b32 v13, v14, v13, vcc')
    a('s_cmp_eq_u32 s30, 0\ns_cselect_b64 vcc, -1, 0')
    a('v_cndmask_b32 v12, v12, v13, vcc\nv_lshl_add_u32 v11, v12, 2, s27')
    stamp(a, 1, st)
    UR = 128; UI = 144
    for t in range(4):
        for part, O in ((0, UR), (1, UI)):
            for kk in range(2):
                a('v_mfma_f32_16x16x32_f16 %s, %s, %s, %s' % (vr(O + 4 * t, 4), vr(ZF + 8 * t + 4 * kk, 4), vr(B1 + 8 * kk + 4 * part, 4), vr(O + 4 * t, 4) if kk else '0'))
    stamp(a, 2, st)
    for t in range(4):
        for j in (0, 2):
            r, i, c, s_ = vr(UR + 4 * t + j, 2), vr(UI + 4 * t + j, 2), vr(TC + 4 * t + j, 2), vr(TSN + 4 * t + j, 2)
            T0, T1 = vr(40 + 2 * j, 2), vr(42 + 2 * j, 2)
            a('v_pk_mul_f32 %s, %s, %s\nv_pk_mul_f32 %s, %s, %s' % (T0, r, c, T1, i, c))
            a('v_pk_fma_f32 %s, %s, %s, %s\nv_pk_fma_f32 %s, %s, %s, %s neg_lo:[1,0,0] neg_hi:[1,0,0]' % (T0, i, s_, T0, T1, r, s_, T1))
        for j in (0, 2):
            R0, I0 = 40 + 2 * j, 42 + 2 * j
            a('v_cvt_pk_f16_f32 v%d, v%d, v%d\nv_cvt_pk_f16_f32 v%d, v%d, v%d' % (16 + 4 * t + j // 2, R0, R0 + 1, 18 + 4 * t + j // 2, I0, I0 + 1))
            if t == 1: a('v_cvt_pk_f16_f32 v%d, v%d, v%d\nv_cvt_pk_f16_f32 v%d, -v%d, -v%d' % (32 + j // 2, I0, I0 + 1, 34 + j // 2, R0, R0 + 1))
            if t == 3: a('v_cvt_pk_f16_f32 v%d, -v%d, -v%d\nv_cvt_pk_f16_f32 v%d, v%d, v%d' % (36 + j // 2, I0, I0 + 1, 38 + j // 2, R0, R0 + 1))
        M = lambda d, A, B, c: a('v_mfma_f32_16x16x32_f16 %s, %s, %s, %s' % (vr(d, 4), vr(A2 + 4 * A, 4), vr(B, 4), vr(d, 4) if c else '0'))
        if t == 0: M(64, 0, 16, 0)
        if t == 1: M(72, 1, 20, 0); M(76, 1, 32, 0)
        if t == 2: M(68, 2, 24, 0)
        if t == 3: M(72, 3, 28, 1); M(76, 3, 36, 1)
    for j in (0, 2):
        a('v_pk_add_f32 %s, %s, %s\nv_pk_add_f32 %s, %s, %s neg_lo:[0,1] neg_hi:[0,1]' % (vr(80 + j, 2), vr(64 + j, 2), vr(68 + j, 2), vr(84 + j, 2), vr(64 + j, 2), vr(68 + j, 2)))
    for b, (x, y, neg) in enumerate([(80, 72, 0), (84, 76, 0), (80, 72, 1), (84, 76, 1)]):
        for j in (0, 2):
            a('v_pk_add_f32 %s, %s, %s%s' % (vr(96 + 4 * b + j, 2), vr(x + j, 2), vr(y + j, 2), ' neg_lo:[0,1] neg_hi:[0,1]' if neg else ''))
        a('ds_write_b128 v8, %s offset:%d' % (vr(96 + 4 * b, 4), 32 * b))
    a.wait_all(vm=False); a('s_barrier')
    stamp(a, 3, st)
    a('s_cmp_ge_u32 s3, 4\ns_cbranch_scc1 %s_fin' % name)
    Y = 64
    W = YW // 256
    for u in range(4):
        if u: a('v_add_u32 v9, %d, v9\nv_add_u32 v10, %d, v10' % (YN, YN))
        mi = 10 if u else 11
        a('ds_read2st64_b32 %s, v9 offset0:0 offset1:%d' % (vr(Y + 8 * u, 2), W))
        a('ds_read2st64_b32 %s, v9 offset0:%d offset1:%d' % (vr(Y + 8 * u + 2, 2), 2 * W, 3 * W))
        a('ds_read2st64_b32 %s, v%d offset0:%d offset1:%d' % (vr(Y + 8 * u + 4, 2), mi, 4 * W, 3 * W))
        a('ds_read2st64_b32 %s, v%d offset0:%d offset1:%d' % (vr(Y + 8 * u + 6, 2), mi, 2 * W, W))
    for u in range(4):
        for j in range(4):
            a('v_lshlrev_b32 v%d, 16, v%d\nv_and_b32 v%d, 0xffff0000, v%d' % (16 + 8 * u + 2 * j, XR + 4 * u + j, 17 + 8 * u + 2 * j, XR + 4 * u + j))
    for u in range(4):
        for j in range(4): a('v_pk_add_f32 %s, %s, %s' % (vr(16 + 8 * u + 2 * j, 2), vr(16 + 8 * u + 2 * j, 2), vr(Y + 8 * u + 2 * j, 2)))
        for j in range(4): a('v_cvt_pk_bf16_f32 v%d, v%d, v%d' % (XR + 4 * u + j, 16 + 8 * u + 2 * j, 17 + 8 * u + 2 * j))
        a('s_add_u32 s27, s%d, %d' % (34 + u, WS_X1))
        a('buffer_store_dwordx4 %s, v4, s[8:11], s27 offen' % vr(XR + 4 * u, 4) + POL)
    a('s_cmp_eq_u32 s20, 0\ns_cbranch_scc0 %s_fin' % name)
    a('v_lshrrev_b32 v4, 2, v4')
    for u in range(4):
        a('s_lshl_b32 s27, s%d, 7\ns_add_u32 s27, s27, %d' % (30 + u, WS_MU + (2 + layer) * 8192))
        a('buffer_store_dword v%d, v4, s[8:11], s27 offen' % (Y + 8 * u))
    a.label(name + '_fin')
    a.reset()
    stamp(a, 4, st)
    stamp_out(a, 5, idx, st, 3, 's[8:11]')
    a.label(name + '_end')
    a('s_endpgm')
```

```python
import sys
from ab import *
from layout import *
import ffn, fnet
def build(st):
    a = Asm(); L = []; descs = []
    def add(nm, grid, blk, lds, vg, accum=None):
        L.append((nm, grid, blk, lds))
        d = kernel_desc(nm, vg, accum=accum)
        if d not in descs: descs.append(d)
    fnet.repack_kernel(a, 'rp_kernel', st, len(L)); add('rp_kernel', 432, 256, ffn.SLOT, 64)
    for l in range(2):
        fnet.k1_kernel(a, 'k1l%d_kernel' % l, l, st, len(L)); add('k1l%d_kernel' % l, 256, 576, fnet.K1_LDS + 9216, 112)
        fnet.k2_kernel(a, 'k2l%d_kernel' % l, l, st, len(L)); add('k2l%d_kernel' % l, 144, 320, fnet.K2_LDS, 160)
        ffn.ffn_kernel(a, 'ffn%d_kernel' % l, l, st, len(L)); add('ffn%d_kernel' % l, 256, 256, 4 * ffn.SLOT, 512, 256)
    fnet.k4_kernel(a, 'k4_kernel', st, len(L)); add('k4_kernel', 256, 576, 0, 48)
    print('instrs', a.n_ins, 'nops', a.nops)
    return file_text(L, a.text(), descs)
if __name__ == '__main__':
    for kv in sys.argv[3:]:
        k_, v_ = kv.split('=')
        if k_.startswith('POL'): setattr(fnet, k_, ' ' + v_.replace('+', ' '))
        elif k_.endswith('POL') or k_ == 'APOL2': setattr(ffn, k_, v_.replace('+', ' '))
        elif k_ == 'PF': fnet.PF = int(v_); ffn.PF = int(v_)
        else: setattr(ffn, k_, int(v_))
    open(sys.argv[1], 'w').write(build(int(sys.argv[2])))
```
